```python
import torch

def _softmax(x, axis=-1):
    return torch.softmax(x, dim=axis)
def _gelu(x):
    return torch.nn.functional.gelu(x, approximate="tanh")
def _silu(x):
    return torch.nn.functional.silu(x)
def _sigmoid(x):
    return torch.sigmoid(x)
def _layernorm(x, axis=-1, eps=1e-5):
    m = x.mean(dim=axis, keepdim=True)
    v = x.var(dim=axis, keepdim=True, unbiased=False)
    return (x - m) / torch.sqrt(v + eps)
def _scatter_add(tgt, idx, src, axis=0):
    return tgt.clone().index_add_(axis, idx, src)
def _segment_sum(src, seg, n):
    out = torch.zeros((n,) + src.shape[1:], dtype=src.dtype)
    return out.index_add_(0, seg, src)
def _pad(x, pw):
    flat = tuple(v for pair in reversed(pw) for v in pair)
    return torch.nn.functional.pad(x, flat)

kernel_name = 'gather_scatter__molecular_angular_gemnet__graph'

def setup_inputs():

    _w = (lambda a: (lambda t: t.to(torch.bfloat16) if t.is_floating_point() else t)(torch.as_tensor(a)))
    N, deg, De, L = 10000, 16, 4, 1
    E = N * deg
    T = E * deg
    NR = 8
    dist = torch.rand(E).to(float)
    angle = (torch.rand(T) * torch.pi).to(float)
    centers = torch.linspace(0.0, 1.0, NR).to(float)
    ang_freq = torch.arange(1, L + 1).to(float)
    return {
        "m": _w((lambda *s: torch.randn(*s, dtype=torch.bfloat16) * 0.05)(E, De)),
        "idx_in": _w((lambda lo, hi, *s: torch.randint(lo, hi, s))(0, E, T).to(torch.int64)),
        "idx_out": _w((lambda lo, hi, *s: torch.randint(lo, hi, s))(0, E, T).to(torch.int64)),
        "dist": _w(dist),
        "angle": _w(angle),
        "centers": _w(centers),
        "ang_freq": _w(ang_freq),
        "w_rbf": _w((lambda *s: torch.randn(*s, dtype=torch.bfloat16) * 0.4)(NR, De)),
        "w_sbf": _w((lambda *s: torch.randn(*s, dtype=torch.bfloat16) * 0.4)(NR * L, De)),
        "w_down": _w((lambda *s: torch.randn(*s, dtype=torch.bfloat16) * 0.4)(De, De)),
        "w_up": _w((lambda *s: torch.randn(*s, dtype=torch.bfloat16) * 0.4)(De, De)),
    }

def reference(m, idx_in, idx_out, dist, angle, centers, ang_freq, w_rbf, w_sbf, w_down, w_up):
    E, De = m.shape[0], m.shape[1]
    NR = centers.shape[0]
    L = ang_freq.shape[0]
    rbf = torch.exp(-10.0 * (dist[:, None] - centers[None, :]) ** 2)
    cbf = torch.cos(ang_freq[None, :] * angle[:, None])
    rbf_t = rbf[idx_out]
    sbf = torch.reshape(rbf_t[:, :, None] * cbf[:, None, :], (-1, NR * L))
    x = (m[idx_in] @ w_down) * (sbf @ w_sbf)
    agg = _segment_sum(x, idx_out, E)
    return m + (agg @ w_up) * (rbf @ w_rbf)
```

```python
import sys
HDR = open('gather_scatter__molecular_angular_gemnet__graph.s.ref').read().split('; Override launch')[0]
E=160000; T=2560000
out=[]
def p(s): out.append(s)
p(HDR.rstrip())
p("; @launch kernel=zero_kernel grid=(625,1,1) block=(256,1,1) lds=0")
p("; @launch kernel=scat_kernel grid=(40000,1,1) block=(256,1,1) lds=0")
p("; @launch kernel=fin_kernel grid=(625,1,1) block=(256,1,1) lds=0")
p('.amdgcn_target "amdgcn-amd-amdhsa--gfx950"')
p(".text")
def head(n):
    p(f".globl {n}\n.p2align 8\n.type {n},@function\n{n}:")
def desc(n,v,s):
    return f""".amdhsa_kernel {n}
  .amdhsa_next_free_vgpr {v}
  .amdhsa_next_free_sgpr {s}
  .amdhsa_accum_offset {(v+3)//4*4}
  .amdhsa_group_segment_fixed_size 0
  .amdhsa_kernarg_size 112
  .amdhsa_user_sgpr_count 2
  .amdhsa_user_sgpr_kernarg_segment_ptr 1
  .amdhsa_system_sgpr_workgroup_id_x 1
  .amdhsa_float_denorm_mode_32 3
.end_amdhsa_kernel"""
def srd(d, b, n):
    p(f"  s_mov_b32 s{d}, s{b}\n  s_and_b32 s{d+1}, s{b+1}, 0xffff\n  s_mov_b32 s{d+2}, {n}\n  s_mov_b32 s{d+3}, 0x20000")
head("zero_kernel")
p("  s_load_dwordx2 s[4:5], s[0:1], 104\n  s_waitcnt lgkmcnt(0)")
srd(8,4,E*16)
p("""  s_lshl_b32 s3, s2, 8
  v_add_u32 v1, s3, v0
  v_lshlrev_b32 v1, 4, v1
  v_mov_b32 v4, 0
  v_mov_b32 v5, 0
  v_mov_b32 v6, 0
  v_mov_b32 v7, 0
  buffer_store_dwordx4 v[4:7], v1, s[8:11], 0 offen
  s_endpgm""")
head("scat_kernel")
p("""  s_load_dwordx2 s[4:5], s[0:1], 0
  s_load_dwordx2 s[6:7], s[0:1], 8
  s_load_dwordx2 s[28:29], s[0:1], 16
  s_load_dwordx2 s[30:31], s[0:1], 32
  s_load_dwordx2 s[32:33], s[0:1], 104
  s_load_dwordx2 s[34:35], s[0:1], 48
  s_waitcnt lgkmcnt(0)
  s_load_dword s36, s[34:35], 0""")
srd(8,4,E*8); srd(12,6,T*4); srd(16,28,T*4); srd(20,30,T*2); srd(24,32,E*16)
p(f"""  s_lshl_b32 s3, s2, 8
  v_add_u32 v1, s3, v0
  v_lshrrev_b32 v2, 2, v1       ; t
  v_and_b32 v3, 3, v1           ; comp
  v_lshlrev_b32 v4, 2, v2
  v_lshlrev_b32 v5, 1, v2
  buffer_load_dword v6, v4, s[12:15], 0 offen
  buffer_load_dword v7, v4, s[16:19], 0 offen
  buffer_load_ushort v8, v5, s[20:23], 0 offen
  s_mov_b32 s37, {T}
  v_cmp_gt_u32 vcc, s37, v2
  s_and_saveexec_b64 s[40:41], vcc
  s_cbranch_execz L_scat_done
  s_waitcnt vmcnt(0) lgkmcnt(0)
  s_lshl_b32 s36, s36, 16
  v_mov_b32 v9, s36
  v_mul_f32 v9, 0.15915494309189535, v9
  v_lshlrev_b32 v8, 16, v8
  v_mul_f32 v8, v8, v9
  v_fract_f32 v8, v8
  v_cos_f32 v8, v8
  v_lshlrev_b32 v6, 3, v6
  v_lshl_add_u32 v6, v3, 1, v6
  buffer_load_ushort v10, v6, s[8:11], 0 offen
  v_lshlrev_b32 v7, 4, v7
  v_lshl_add_u32 v7, v3, 2, v7
  s_waitcnt vmcnt(0)
  v_lshlrev_b32 v10, 16, v10
  v_mul_f32 v10, v10, v8
  buffer_atomic_add_f32 v10, v7, s[24:27], 0 offen
L_scat_done:
  s_endpgm""")
head("fin_kernel")
p("""  s_load_dwordx2 s[4:5], s[0:1], 0
  s_load_dwordx2 s[6:7], s[0:1], 24
  s_load_dwordx4 s[28:31], s[0:1], 56
  s_load_dwordx4 s[32:35], s[0:1], 72
  s_load_dwordx2 s[36:37], s[0:1], 40
  s_load_dwordx2 s[38:39], s[0:1], 88
  s_load_dwordx2 s[40:41], s[0:1], 104
  s_waitcnt lgkmcnt(0)""")
srd(8,4,E*8); srd(12,6,E*2); srd(16,38,E*8); srd(20,40,E*16)
p("""  s_lshl_b32 s3, s2, 8
  v_add_u32 v1, s3, v0
  v_lshlrev_b32 v2, 1, v1
  v_lshlrev_b32 v3, 3, v1
  v_lshlrev_b32 v4, 4, v1
  buffer_load_ushort v5, v2, s[12:15], 0 offen
  buffer_load_dwordx2 v[6:7], v3, s[8:11], 0 offen
  buffer_load_dwordx4 v[8:11], v4, s[20:23], 0 offen
  s_load_dwordx16 s[44:59], s[28:29], 0   ; w_rbf
  s_load_dwordx16 s[60:75], s[30:31], 0   ; w_sbf
  s_load_dwordx8 s[76:83], s[32:33], 0    ; w_down
  s_load_dwordx8 s[84:91], s[34:35], 0    ; w_up
  s_load_dwordx4 s[92:95], s[36:37], 0    ; centers
  s_waitcnt vmcnt(0) lgkmcnt(0)
  v_lshlrev_b32 v5, 16, v5""")
def w(base, i, tmp):
    s = base + i//2
    if i%2==0: p(f"  v_lshlrev_b32 v{tmp}, 16, s{s}")
    else: p(f"  v_mov_b32 v{tmp}, s{s}\n  v_and_b32 v{tmp}, 0xffff0000, v{tmp}")
for k in range(8):
    w(92,k,40)
    p(f"""  v_sub_f32 v41, v5, v40
  v_mul_f32 v41, v41, v41
  v_mul_f32 v41, 0xc166d4ca, v41
  v_exp_f32 v{12+k}, v41""")
p("  s_nop 1")
for j in range(4):
    p(f"  v_mov_b32 v{20+j}, 0\n  v_mov_b32 v{24+j}, 0")
    for k in range(8):
        w(60,k*4+j,40); p(f"  v_fmac_f32 v{20+j}, v{12+k}, v40")
        w(44,k*4+j,40); p(f"  v_fmac_f32 v{24+j}, v{12+k}, v40")
for j in range(4):
    p(f"  v_mov_b32 v{28+j}, 0")
    for i in range(4):
        w(76,i*4+j,40); p(f"  v_fmac_f32 v{28+j}, v{8+i}, v40")
    p(f"  v_mul_f32 v{28+j}, v{28+j}, v{20+j}")
p("""  v_lshlrev_b32 v32, 16, v6
  v_and_b32 v33, 0xffff0000, v6
  v_lshlrev_b32 v34, 16, v7
  v_and_b32 v35, 0xffff0000, v7""")
for j in range(4):
    p(f"  v_mov_b32 v{36+j}, 0")
    for i in range(4):
        w(84,i*4+j,40); p(f"  v_fmac_f32 v{36+j}, v{28+i}, v40")
    p(f"  v_fmac_f32 v{32+j}, v{36+j}, v{24+j}")
p("""  v_cvt_pk_bf16_f32 v6, v32, v33
  v_cvt_pk_bf16_f32 v7, v34, v35
  buffer_store_dwordx2 v[6:7], v3, s[16:19], 0 offen
  s_endpgm""")
p('.section .rodata,"a"\n.p2align 6')
p(desc("zero_kernel",8,16)); p(".p2align 6"); p(desc("scat_kernel",16,48)); p(".p2align 6"); p(desc("fin_kernel",48,100))
open(sys.argv[1],'w').write("\n".join(out)+"\n")
```

```python
import struct, math

REF = 'gather_scatter__molecular_angular_gemnet__graph.s.ref'
E = 160000
T = 2560000

def f32hex(x):
    return hex(struct.unpack('<I', struct.pack('<f', x))[0])

class Asm:
    def __init__(self):
        self.lines = []
    def __call__(self, s=""):
        for l in s.split("\n"):
            self.lines.append(l)
    def text(self):
        return "\n".join(self.lines) + "\n"
    def header(self, launches):
        hdr = open(REF).read().split('; Override launch')[0].rstrip()
        self(hdr)
        for (name, grid, block, lds) in launches:
            self(f"; @launch kernel={name} grid=({grid},1,1) block=({block},1,1) lds={lds}")
        self('.amdgcn_target "amdgcn-amd-amdhsa--gfx950"')
        self(".text")
    def kernel(self, name):
        self(f".globl {name}\n.p2align 8\n.type {name},@function\n{name}:")
    def descs(self, ks):
        self('.section .rodata,"a"')
        for (name, v, s) in ks:
            self(".p2align 6")
            self(f""".amdhsa_kernel {name}
  .amdhsa_next_free_vgpr {v}
  .amdhsa_next_free_sgpr {s}
  .amdhsa_accum_offset {(v + 3) // 4 * 4}
  .amdhsa_group_segment_fixed_size 0
  .amdhsa_kernarg_size 112
  .amdhsa_user_sgpr_count 2
  .amdhsa_user_sgpr_kernarg_segment_ptr 1
  .amdhsa_system_sgpr_workgroup_id_x 1
  .amdhsa_float_denorm_mode_32 3
.end_amdhsa_kernel""")
    def srd(self, d, b, nbytes, add=0):
        if add:
            self(f"  s_add_u32 s{d}, s{b}, {hex(add)}")
            self(f"  s_addc_u32 s{d+1}, s{b+1}, 0")
            self(f"  s_and_b32 s{d+1}, s{d+1}, 0xffff")
        else:
            self(f"  s_mov_b32 s{d}, s{b}")
            self(f"  s_and_b32 s{d+1}, s{b+1}, 0xffff")
        self(f"  s_mov_b32 s{d+2}, {nbytes}")
        self(f"  s_mov_b32 s{d+3}, 0x20000")
```

```python
import sys
from common import *

NS = 250; CH = 10240; BE = 640; P = 250
A_OFF = 0; C_OFF = 0x1000000; T_OFF = 0x2000000
MAGIC = (2**32 + BE - 1) // BE
assert all(((i * MAGIC) >> 32) == i // BE for i in range(0, E, 1))
K1_LDS = 2048 + CH * 4 + CH * 2
K2_LDS = BE * 32
LDNT = " nt"
STF = ""

import os
_d = os.environ.get('DBG', '')
_r = {'S': 28, 'g': 12, 'h': 16}.get(_d)
DBGOUT = '' if _r is None else "\n".join(f"  v_mov_b32 v{40+i}, v{_r+i}" for i in range(4))
a = Asm()
a.header([("part_kernel", NS, 1024, K1_LDS), ("acc_kernel", P, 1024, K2_LDS)])

def k1():
    a.kernel("part_kernel")
    vO = [8 + k for k in range(10)]
    vI = [20 + k for k in range(10)]
    vG = [30, 31, 32, 33, 34]
    vL = [36 + k for k in range(10)]
    vR = [46 + k for k in range(10)]
    vP = [56 + k for k in range(10)]
    a(f"""  s_cmp_ge_u32 s2, {NS}
  s_cbranch_scc1 L_part_end
  s_load_dwordx4 s[4:7], s[0:1], 8
  s_load_dwordx2 s[8:9], s[0:1], 32
  s_load_dwordx2 s[10:11], s[0:1], 48
  s_load_dwordx2 s[12:13], s[0:1], 104
  v_lshlrev_b32 v1, 4, v0
  v_lshlrev_b32 v2, 3, v0
  v_lshlrev_b32 v3, 2, v0
  v_mov_b32 v4, 0
  v_mov_b32 v5, 1
  ds_write_b32 v3, v4
  v_readfirstlane_b32 s38, v0
  s_mul_i32 s32, s2, {CH*4}
  s_add_u32 s33, s32, 16384
  s_add_u32 s34, s32, 32768
  s_mul_i32 s35, s2, {CH*2}
  s_add_u32 s36, s35, 8192
  s_add_u32 s37, s35, 16384
  s_lshr_b32 s38, s38, 6
  s_movk_i32 s40, {-BE}
  s_waitcnt lgkmcnt(0)""")
    a.srd(16, 6, T * 4); a.srd(20, 4, T * 4); a.srd(24, 8, T * 2)
    a(f"""  s_load_dword s39, s[10:11], 0
  buffer_load_dwordx4 v[8:11], v1, s[16:19], s32 offen{LDNT}
  buffer_load_dwordx4 v[12:15], v1, s[16:19], s33 offen{LDNT}
  buffer_load_dwordx2 v[16:17], v2, s[16:19], s34 offen{LDNT}
  buffer_load_dwordx4 v[20:23], v1, s[20:23], s32 offen{LDNT}
  buffer_load_dwordx4 v[24:27], v1, s[20:23], s33 offen{LDNT}
  buffer_load_dwordx2 v[28:29], v2, s[20:23], s34 offen{LDNT}
  buffer_load_dwordx2 v[30:31], v2, s[24:27], s35 offen{LDNT}
  buffer_load_dwordx2 v[32:33], v2, s[24:27], s36 offen{LDNT}
  buffer_load_dword v34, v3, s[24:27], s37 offen{LDNT}""")
    a.srd(28, 12, T_OFF + NS * 1024)
    a("  s_barrier")
    for g, (lo, hi) in enumerate([(0, 4), (4, 8), (8, 10)]):
        a(f"  s_waitcnt vmcnt({8-g})")
        for k in range(lo, hi):
            a(f"  v_mul_hi_u32_u24 v6, {hex(MAGIC)}, v{vO[k]}")
            a(f"  v_mad_i32_i24 v{vL[k]}, v6, s40, v{vO[k]}")
            a(f"  v_lshlrev_b32 v{vO[k]}, 2, v6")
            a(f"  ds_add_rtn_u32 v{vR[k]}, v{vO[k]}, v5")
    a(f"""  s_waitcnt lgkmcnt(0)
  s_barrier
  s_cmp_lg_u32 s38, 0
  s_cbranch_scc1 L_part_noscan
  ds_read_b128 v[56:59], v1
  s_waitcnt lgkmcnt(0)
  v_add_u32 v60, v56, v57
  v_add_u32 v61, v60, v58
  v_add_u32 v62, v61, v59
  v_mov_b32 v63, v62
  s_nop 1
  v_add_u32_dpp v63, v63, v63 row_shr:1 row_mask:0xf bank_mask:0xf bound_ctrl:0
  s_nop 1
  v_add_u32_dpp v63, v63, v63 row_shr:2 row_mask:0xf bank_mask:0xf bound_ctrl:0
  s_nop 1
  v_add_u32_dpp v63, v63, v63 row_shr:4 row_mask:0xf bank_mask:0xf bound_ctrl:0
  s_nop 1
  v_add_u32_dpp v63, v63, v63 row_shr:8 row_mask:0xf bank_mask:0xf bound_ctrl:0
  s_nop 1
  v_add_u32_dpp v63, v63, v63 row_bcast:15 row_mask:0xa bank_mask:0xf
  s_nop 1
  v_add_u32_dpp v63, v63, v63 row_bcast:31 row_mask:0xc bank_mask:0xf
  v_sub_u32 v64, v63, v62
  v_add_u32 v65, v64, v56
  v_add_u32 v66, v64, v60
  v_add_u32 v67, v64, v61
  ds_write_b128 v1, v[64:67] offset:1024
  v_lshl_or_b32 v56, v56, 16, v64
  v_lshl_or_b32 v57, v57, 16, v65
  v_lshl_or_b32 v58, v58, 16, v66
  v_lshl_or_b32 v59, v59, 16, v67
  s_lshl_b32 s41, s2, 10
  s_add_u32 s41, s41, {hex(T_OFF)}
  buffer_store_dwordx4 v[56:59], v1, s[28:31], s41 offen
  s_waitcnt lgkmcnt(0)
L_part_noscan:
  s_barrier""")
    for k in range(10):
        a(f"  ds_read_b32 v{vP[k]}, v{vO[k]} offset:1024")
    a(f"""  s_lshl_b32 s39, s39, 16
  v_mov_b32 v7, s39
  v_mul_f32 v7, 0.15915494, v7""")
    for g, (lo, hi) in enumerate([(0, 4), (4, 8), (8, 10)]):
        a(f"  s_waitcnt vmcnt({5-g})")
        for k in range(lo, hi):
            a(f"  v_lshlrev_b32 v{vI[k]}, 3, v{vI[k]}")
            a(f"  v_lshl_or_b32 v{vI[k]}, v{vL[k]}, 21, v{vI[k]}")
    a("  s_waitcnt lgkmcnt(0)")
    for k in range(10):
        a(f"  v_add_u32 v{vP[k]}, v{vP[k]}, v{vR[k]}")
        a(f"  v_lshlrev_b32 v{vR[k]}, 2, v{vP[k]}")
        a(f"  v_lshlrev_b32 v{vP[k]}, 1, v{vP[k]}")
        a(f"  ds_write_b32 v{vR[k]}, v{vI[k]} offset:2048")
    waits = {0: 2, 2: 1, 4: 0}
    for p in range(5):
        if p in waits: a(f"  s_waitcnt vmcnt({waits[p]})")
        g = vG[p]
        a(f"""  v_lshlrev_b32 v6, 16, v{g}
  v_and_b32 v66, 0xffff0000, v{g}
  v_mul_f32 v6, v7, v6
  v_mul_f32 v66, v7, v66
  v_fract_f32 v6, v6
  v_fract_f32 v66, v66
  v_cos_f32 v6, v6
  v_cos_f32 v66, v66
  s_nop 0
  v_cvt_pk_bf16_f32 v{g}, v6, v66
  ds_write_b16 v{vP[2*p]}, v{g} offset:{2048 + CH*4}
  ds_write_b16_d16_hi v{vP[2*p+1]}, v{g} offset:{2048 + CH*4}""")
    a(f"""  s_mul_i32 s42, s2, {CH*4}
  s_add_u32 s43, s42, 16384
  s_add_u32 s44, s42, 32768
  s_mul_i32 s45, s2, {CH*2}
  s_add_u32 s45, s45, {hex(C_OFF)}
  s_sub_u32 s46, s45, 8192
  s_add_u32 s47, s45, 8192
  s_cmp_lt_u32 s38, 8
  s_cselect_b32 s44, s44, s46
  s_waitcnt lgkmcnt(0)
  s_barrier
  ds_read_b128 v[8:11], v1 offset:2048
  ds_read_b128 v[12:15], v1 offset:{2048+16384}
  ds_read_b128 v[16:19], v1 offset:{2048+32768}
  s_cmp_ge_u32 s38, 12
  s_cbranch_scc1 L_part_three
  ds_read_b128 v[20:23], v1 offset:{2048+49152}
  s_waitcnt lgkmcnt(0)
  buffer_store_dwordx4 v[20:23], v1, s[28:31], s47 offen{STF}
L_part_three:
  s_waitcnt lgkmcnt(0)
  buffer_store_dwordx4 v[8:11], v1, s[28:31], s42 offen{STF}
  buffer_store_dwordx4 v[12:15], v1, s[28:31], s43 offen{STF}
  buffer_store_dwordx4 v[16:19], v1, s[28:31], s44 offen{STF}
L_part_end:
  s_endpgm""")

def k2():
    NSLOT = 17; D = 2; RING = 4
    a.kernel("acc_kernel")
    sBase = [16 + i for i in range(NSLOT)]
    sCnt = [33 + i for i in range(NSLOT)]
    vA = [20 + i for i in range(NSLOT)]
    vC = [37 + i for i in range(NSLOT)]
    vM = lambda i, j: 54 + (i % RING) * 4 + j
    a(f"""  s_cmp_ge_u32 s2, {P}
  s_cbranch_scc1 L_acc_end
  s_load_dwordx2 s[16:17], s[0:1], 0
  s_load_dwordx2 s[18:19], s[0:1], 24
  s_load_dwordx2 s[20:21], s[0:1], 104
  s_load_dwordx2 s[84:85], s[0:1], 88
  s_load_dwordx2 s[86:87], s[0:1], 40
  s_load_dwordx4 s[88:91], s[0:1], 56
  s_load_dwordx4 s[92:95], s[0:1], 72
  v_and_b32 v1, 63, v0
  v_readfirstlane_b32 s50, v0
  v_lshlrev_b32 v2, 2, v1
  v_lshlrev_b32 v3, 1, v1
  v_and_b32 v4, 3, v0
  v_lshlrev_b32 v5, 3, v4
  v_lshlrev_b32 v4, 1, v4
  v_lshlrev_b32 v70, 4, v0
  v_mov_b32 v76, 0
  v_mov_b32 v77, 0
  v_mov_b32 v78, 0
  v_mov_b32 v79, 0
  ds_write_b128 v70, v[76:79]
  ds_write_b128 v70, v[76:79] offset:16384
  s_lshr_b32 s50, s50, 6
  s_lshl_b32 s51, s2, 2
  s_waitcnt lgkmcnt(0)""")
    a.srd(52, 20, NS * 1024, add=T_OFF)
    a(f"""  v_lshlrev_b32 v71, 4, v1
  v_add_u32 v71, s50, v71
  v_lshlrev_b32 v72, 10, v71
  buffer_load_dword v7, v72, s[52:55], s51 offen""")
    a.srd(4, 20, NS * CH * 4, add=A_OFF); a.srd(8, 20, NS * CH * 2, add=C_OFF); a.srd(12, 16, E * 8); a.srd(56, 18, E * 2)
    a(f"""  s_mul_i32 s51, s2, {BE}
  v_add_u32 v73, s51, v0
  v_lshlrev_b32 v74, 1, v73
  v_lshlrev_b32 v75, 3, v73
  s_cmp_ge_u32 s50, {BE // 64}
  s_cbranch_scc1 L_acc_nofin0
  buffer_load_ushort v9, v74, s[56:59], 0 offen
  buffer_load_dwordx2 v[10:11], v75, s[12:15], 0 offen
L_acc_nofin0:""")
    for i in range(NSLOT): a(f"  v_mov_b32 v{vC[i]}, 0")
    for r in range(RING * 4): a(f"  v_mov_b32 v{54 + r}, 0")
    a(f"""  s_mov_b32 s96, 0
  s_barrier
  s_cmp_ge_u32 s50, {BE // 64}
  s_cbranch_scc1 L_acc_w0
  s_waitcnt vmcnt(2)
  s_branch L_acc_w1
L_acc_w0:
  s_waitcnt vmcnt(0)
L_acc_w1:
  v_mul_u32_u24 v71, {CH * 4}, v71
  v_and_b32 v6, 0xffff, v7
  v_lshrrev_b32 v7, 16, v7
  v_lshl_add_u32 v6, v6, 2, v71
L_acc_round:
  v_cmp_lt_u32 vcc, 64, v7
  v_readlane_b32 s51, v7, 16
  s_nop 1
  s_cmp_eq_u64 vcc, 0
  s_cbranch_scc1 L_acc_nospare
  s_cmp_lg_u32 s51, 0
  s_cbranch_scc1 L_acc_nospare
  s_ff1_i32_b64 s51, vcc
  s_nop 1
  v_readlane_b32 s97, v6, s51
  v_readlane_b32 s98, v7, s51
  s_nop 1
  s_add_u32 s97, s97, 256
  s_sub_u32 s98, s98, 64
  s_lshl_b64 vcc, 1, s51
  v_writelane_b32 v6, s97, 16
  v_writelane_b32 v7, s98, 16
  v_cndmask_b32 v7, v7, 64, vcc
L_acc_nospare:
  v_min_u32 v8, 64, v7
  s_nop 0""")
    for i in range(NSLOT):
        a(f"  v_readlane_b32 s{sBase[i]}, v6, {i}")
        a(f"  v_readlane_b32 s{sCnt[i]}, v8, {i}")
    a("  v_sub_u32 v7, v7, v8\n  v_add_u32 v6, 256, v6")
    for i in range(NSLOT): a(f"  v_mov_b32 v{vA[i]}, -1")
    for i in range(NSLOT):
        a(f"""  v_cmp_gt_u32 vcc, s{sCnt[i]}, v1
  s_lshr_b32 s51, s{sBase[i]}, 1
  s_mov_b64 exec, vcc
  buffer_load_dword v{vA[i]}, v2, s[4:7], s{sBase[i]} offen
  buffer_load_short_d16_hi v{vC[i]}, v3, s[8:11], s51 offen
  s_mov_b64 exec, -1""")
    a(f"""  s_cmp_lg_u32 s96, 0
  s_cbranch_scc1 L_acc_nogh
  s_mov_b32 s96, 1
  s_cmp_ge_u32 s50, {BE // 64}
  s_cbranch_scc1 L_acc_nogh
  s_load_dwordx16 s[16:31], s[90:91], 0
  s_load_dwordx16 s[32:47], s[88:89], 0
  s_load_dwordx4 s[64:67], s[86:87], 0
  s_load_dwordx8 s[68:75], s[92:93], 0
  s_load_dwordx8 s[76:83], s[94:95], 0
  s_waitcnt lgkmcnt(0) vmcnt({2*NSLOT})""")
    for base in (16, 32):
        for kp in range(4):
            for jp in range(2):
                x = base + (2 * kp) * 2 + jp; y = base + (2 * kp + 1) * 2 + jp
                a(f"  s_pack_ll_b32_b16 s51, s{x}, s{y}\n  s_pack_hh_b32_b16 s{y}, s{x}, s{y}\n  s_mov_b32 s{x}, s51")
    a("  v_lshlrev_b32 v9, 16, v9")
    NEG10 = f32hex(-10.0); LOG2E = f32hex(math.log2(math.e))
    for kp in range(4):
        c = 64 + kp
        a(f"""  s_lshl_b32 s51, s{c}, 16
  s_and_b32 s97, s{c}, 0xffff0000
  v_subrev_f32 v70, s51, v9
  v_subrev_f32 v71, s97, v9
  v_cvt_pk_bf16_f32 v72, v70, v71
  v_lshlrev_b32 v70, 16, v72
  v_and_b32 v71, 0xffff0000, v72
  v_mul_f32 v70, v70, v70
  v_mul_f32 v71, v71, v71
  v_cvt_pk_bf16_f32 v72, v70, v71
  v_lshlrev_b32 v70, 16, v72
  v_and_b32 v71, 0xffff0000, v72
  v_mul_f32 v70, {NEG10}, v70
  v_mul_f32 v71, {NEG10}, v71
  v_cvt_pk_bf16_f32 v72, v70, v71
  v_lshlrev_b32 v70, 16, v72
  v_and_b32 v71, 0xffff0000, v72
  v_mul_f32 v70, {LOG2E}, v70
  v_mul_f32 v71, {LOG2E}, v71
  v_exp_f32 v70, v70
  v_exp_f32 v71, v71
  s_nop 0
  v_cvt_pk_bf16_f32 v{80 + kp}, v70, v71""")
    for (base, dst) in ((16, 12), (32, 16)):
        for j in range(4):
            jp, hi = j // 2, j % 2
            for kp in range(4):
                s = base + (2 * kp + hi) * 2 + jp
                src2 = "0" if kp == 0 else f"v{dst + j}"
                a(f"  v_dot2_f32_bf16 v{dst + j}, v{80 + kp}, s{s}, {src2}")
    a("""  s_nop 2
  v_cvt_pk_bf16_f32 v70, v16, v17
  v_cvt_pk_bf16_f32 v71, v18, v19
  v_lshlrev_b32 v16, 16, v70
  v_and_b32 v17, 0xffff0000, v70
  v_lshlrev_b32 v18, 16, v71
  v_and_b32 v19, 0xffff0000, v71""")
    a("L_acc_nogh:")
    def G(i):
        a(f"""  v_and_b32 v70, 0x1fffff, v{vA[i]}
  v_lshrrev_b32 v{vA[i]}, 16, v{vA[i]}
  v_and_b32 v{vA[i]}, 0xffe0, v{vA[i]}""")
        for j in range(4):
            a(f"  v_add_u32_dpp v{71 + j}, v70, v4 quad_perm:[{j},{j},{j},{j}] row_mask:0xf bank_mask:0xf")
        for j in range(4):
            a(f"  buffer_load_short_d16_hi v{vM(i, j)}, v{71 + j}, s[12:15], 0 offen")
    def A(i):
        for j in range(4):
            a(f"  v_mul_f32_dpp v{88 + j}, v{vC[i]}, v{vM(i, j)} quad_perm:[{j},{j},{j},{j}] row_mask:0xf bank_mask:0xf")
            a(f"  v_add_u32_dpp v{84 + j}, v{vA[i]}, v5 quad_perm:[{j},{j},{j},{j}] row_mask:0xf bank_mask:0xf")
        for j in range(4):
            a(f"  v_cvt_f64_f32 v[{76 + 2*j}:{77 + 2*j}], v{88 + j}")
        for j in range(4):
            a(f"  ds_add_f64 v{84 + j}, v[{76 + 2*j}:{77 + 2*j}]")
    for k in range(D):
        a(f"  s_waitcnt vmcnt({2 * (NSLOT - 1 - k) + 4 * k})")
        G(k)
    for i in range(NSLOT):
        if i + D < NSLOT:
            if i == 0: a(f"  s_waitcnt vmcnt({2 * (NSLOT - 1 - D) + 4 * D})")
            G(i + D)
            a(f"  s_waitcnt vmcnt({4 * D})")
        else:
            a(f"  s_waitcnt vmcnt({4 * (NSLOT - 1 - i)})")
        A(i)
    a(f"""  v_cmp_lt_u32 vcc, 0, v7
  s_nop 1
  s_cmp_lg_u64 vcc, 0
  s_cbranch_scc1 L_acc_round
  s_waitcnt lgkmcnt(0)
  s_barrier
  s_cmp_ge_u32 s50, {BE // 64}
  s_cbranch_scc1 L_acc_end
  v_lshlrev_b32 v70, 5, v0
  ds_read_b128 v[20:23], v70
  ds_read_b128 v[24:27], v70 offset:16""")
    a("""  s_load_dwordx8 s[68:75], s[92:93], 0
  s_load_dwordx8 s[76:83], s[94:95], 0
  s_waitcnt lgkmcnt(0)""")
    for i in range(8):
        a(f"  s_lshl_b32 s{16 + 2*i}, s{68 + i}, 16\n  s_and_b32 s{17 + 2*i}, s{68 + i}, 0xffff0000")
        a(f"  s_lshl_b32 s{32 + 2*i}, s{76 + i}, 16\n  s_and_b32 s{33 + 2*i}, s{76 + i}, 0xffff0000")
    a.srd(4, 84, E * 8)
    for i in range(4):
        a(f"  v_cvt_f32_f64 v{28 + i}, v[{20 + 2*i}:{21 + 2*i}]")
    for j in range(4):
        a(f"  v_mul_f32 v{32 + j}, s{16 + j}, v28")
        for i in range(1, 4):
            a(f"  v_fmac_f32 v{32 + j}, s{16 + 4*i + j}, v{28 + i}")
    for j in range(4):
        a(f"  v_mul_f32 v{32 + j}, v{32 + j}, v{12 + j}")
    for j in range(4):
        a(f"  v_mul_f32 v{36 + j}, s{32 + j}, v32")
        for i in range(1, 4):
            a(f"  v_fmac_f32 v{36 + j}, s{32 + 4*i + j}, v{32 + i}")
    a(f"""  v_lshlrev_b32 v40, 16, v10
  v_and_b32 v41, 0xffff0000, v10
  v_lshlrev_b32 v42, 16, v11
  v_and_b32 v43, 0xffff0000, v11
  v_fmac_f32 v40, v36, v16
  v_fmac_f32 v41, v37, v17
  v_fmac_f32 v42, v38, v18
  v_fmac_f32 v43, v39, v19
{DBGOUT}
  v_cvt_pk_bf16_f32 v44, v40, v41
  v_cvt_pk_bf16_f32 v45, v42, v43
  s_mul_i32 s51, s2, {BE * 8}
  v_lshlrev_b32 v70, 3, v0
  buffer_store_dwordx2 v[44:45], v70, s[4:7], s51 offen
L_acc_end:
  s_endpgm""")

k1(); k2()
a.descs([("part_kernel", 72, 64), ("acc_kernel", 96, 100)])
open(sys.argv[1], "w").write(a.text())
```

```python
import sys, os
from common import *

env = lambda k, d: type(d)(os.environ.get(k, d))
NS = 250; CH = 10240; BE = 640; P = 250
A_OFF = 0; C_OFF = 0x1000000; T_OFF = 0x2000000; S_OFF = 0x3000000
MAGIC = (2**32 + BE - 1) // BE
assert all(((i * MAGIC) >> 32) == i // BE for i in range(E))
K1_LDS = 2048 + CH * 6
K2_LDS = BE * 32
LDNT = env('LDNT', ' nt'); STF = env('STF', '')
RLD = env('RLD', '')
STAMP = env('STAMP', 0); DBG = env('DBG', '')
D = env('D', 4); GH_AT = env('GH_AT', 3); PRIO = env('PRIO', 1)
NOGATHER = env('NOGATHER', 0); NOATOM = env('NOATOM', 0); XMAP = env('XMAP', 0); NOA = env('NOA', 0); RBAR = env('RBAR', 0); GLD = env('GLD', '')

a = Asm()
a.header([("part_kernel", NS, 1024, K1_LDS), ("acc_kernel", 256 if XMAP else P, 1024, K2_LDS)])

def stamp(i, vreg, sp):
    if STAMP: a(f"  s_memrealtime s[{sp}:{sp+1}]\n  s_waitcnt lgkmcnt(0)\n  v_writelane_b32 v{vreg}, s{sp}, {i}")
def clk(i, vreg, sp):
    if STAMP: a(f"  s_memtime s[{sp}:{sp+1}]\n  s_waitcnt lgkmcnt(0)\n  v_writelane_b32 v{vreg}, s{sp}, {i}")
def stamp_out(kidx, vreg, sp, wavereg, srd, tmp):
    if STAMP: a(f"""  s_lshl_b32 s{sp}, s2, 4
  s_add_u32 s{sp}, s{sp}, s{wavereg}
  s_lshl_b32 s{sp}, s{sp}, 6
  s_add_u32 s{sp}, s{sp}, {hex(S_OFF + kidx * 0x100000)}
  v_and_b32 v{tmp}, 63, v0
  v_cmp_gt_u32 vcc, 16, v{tmp}
  v_lshlrev_b32 v{tmp}, 2, v{tmp}
  s_mov_b64 exec, vcc
  buffer_store_dword v{vreg}, v{tmp}, s[{srd}:{srd+3}], s{sp} offen
  s_mov_b64 exec, -1""")

def k1():
    a.kernel("part_kernel")
    vO = [8 + k for k in range(10)]; vI = [20 + k for k in range(10)]; vG = [30, 31, 32, 33, 34]
    vL = [36 + k for k in range(10)]; vR = [46 + k for k in range(10)]; vP = [56 + k for k in range(10)]
    st = lambda i: stamp(i, 70, 50)
    a(f"""  s_cmp_ge_u32 s2, {NS}
  s_cbranch_scc1 L_part_end
  s_load_dwordx4 s[4:7], s[0:1], 8
  s_load_dwordx2 s[8:9], s[0:1], 32
  s_load_dwordx2 s[10:11], s[0:1], 48
  s_load_dwordx2 s[12:13], s[0:1], 104
  v_lshlrev_b32 v1, 4, v0
  v_lshlrev_b32 v2, 3, v0
  v_lshlrev_b32 v3, 2, v0
  v_mov_b32 v4, 0
  v_mov_b32 v5, 1
  ds_write_b32 v3, v4
  v_readfirstlane_b32 s38, v0
  s_mul_i32 s32, s2, {CH*4}
  s_add_u32 s33, s32, 16384
  s_add_u32 s34, s32, 32768
  s_mul_i32 s35, s2, {CH*2}
  s_add_u32 s36, s35, 8192
  s_add_u32 s37, s35, 16384
  s_lshr_b32 s38, s38, 6
  s_movk_i32 s40, {-BE}
  s_waitcnt lgkmcnt(0)""")
    if STAMP: a("  v_mov_b32 v70, 0")
    st(0)
    a.srd(16, 6, T * 4); a.srd(20, 4, T * 4); a.srd(24, 8, T * 2)
    a(f"""  s_load_dword s39, s[10:11], 0
  buffer_load_dwordx4 v[8:11], v1, s[16:19], s32 offen{LDNT}
  buffer_load_dwordx4 v[12:15], v1, s[16:19], s33 offen{LDNT}
  buffer_load_dwordx2 v[16:17], v2, s[16:19], s34 offen{LDNT}
  buffer_load_dwordx4 v[20:23], v1, s[20:23], s32 offen{LDNT}
  buffer_load_dwordx4 v[24:27], v1, s[20:23], s33 offen{LDNT}
  buffer_load_dwordx2 v[28:29], v2, s[20:23], s34 offen{LDNT}
  buffer_load_dwordx2 v[30:31], v2, s[24:27], s35 offen{LDNT}
  buffer_load_dwordx2 v[32:33], v2, s[24:27], s36 offen{LDNT}
  buffer_load_dword v34, v3, s[24:27], s37 offen{LDNT}""")
    a.srd(28, 12, (S_OFF + 0x200000) if STAMP else (T_OFF + NS * 1024))
    a("  s_barrier")
    for g, (lo, hi) in enumerate([(0, 4), (4, 8), (8, 10)]):
        a(f"  s_waitcnt vmcnt({8-g})")
        st(1 + g)
        for k in range(lo, hi):
            a(f"""  v_mul_hi_u32_u24 v6, {hex(MAGIC)}, v{vO[k]}
  v_mad_i32_i24 v{vL[k]}, v6, s40, v{vO[k]}
  v_lshlrev_b32 v{vO[k]}, 2, v6
  ds_add_rtn_u32 v{vR[k]}, v{vO[k]}, v5""")
    st(4)
    a(f"""  s_waitcnt lgkmcnt(0)
  s_barrier
  s_cmp_lg_u32 s38, 0
  s_cbranch_scc1 L_part_noscan
  ds_read_b128 v[56:59], v1
  s_waitcnt lgkmcnt(0)
  v_add_u32 v60, v56, v57
  v_add_u32 v61, v60, v58
  v_add_u32 v62, v61, v59
  v_mov_b32 v63, v62""")
    for sh in (1, 2, 4, 8):
        a(f"  s_nop 1\n  v_add_u32_dpp v63, v63, v63 row_shr:{sh} row_mask:0xf bank_mask:0xf bound_ctrl:0")
    a(f"""  s_nop 1
  v_add_u32_dpp v63, v63, v63 row_bcast:15 row_mask:0xa bank_mask:0xf
  s_nop 1
  v_add_u32_dpp v63, v63, v63 row_bcast:31 row_mask:0xc bank_mask:0xf
  v_sub_u32 v64, v63, v62
  v_add_u32 v65, v64, v56
  v_add_u32 v66, v64, v60
  v_add_u32 v67, v64, v61
  ds_write_b128 v1, v[64:67] offset:1024
  v_lshl_or_b32 v56, v56, 16, v64
  v_lshl_or_b32 v57, v57, 16, v65
  v_lshl_or_b32 v58, v58, 16, v66
  v_lshl_or_b32 v59, v59, 16, v67
  s_lshl_b32 s41, s2, 10
  s_add_u32 s41, s41, {hex(T_OFF)}
  buffer_store_dwordx4 v[56:59], v1, s[28:31], s41 offen{STF}
  s_waitcnt lgkmcnt(0)
L_part_noscan:
  s_barrier""")
    st(5)
    for k in range(10): a(f"  ds_read_b32 v{vP[k]}, v{vO[k]} offset:1024")
    a(f"""  s_lshl_b32 s39, s39, 16
  v_mov_b32 v7, s39
  v_mul_f32 v7, 0.15915494, v7""")
    for g, (lo, hi) in enumerate([(0, 4), (4, 8), (8, 10)]):
        a(f"  s_waitcnt vmcnt({5-g})")
        for k in range(lo, hi):
            a(f"  v_lshlrev_b32 v{vI[k]}, 3, v{vI[k]}\n  v_lshl_or_b32 v{vI[k]}, v{vL[k]}, 21, v{vI[k]}")
    st(6)
    a("  s_waitcnt lgkmcnt(0)")
    for k in range(10):
        a(f"""  v_add_u32 v{vP[k]}, v{vP[k]}, v{vR[k]}
  v_lshlrev_b32 v{vR[k]}, 2, v{vP[k]}
  v_lshlrev_b32 v{vP[k]}, 1, v{vP[k]}
  ds_write_b32 v{vR[k]}, v{vI[k]} offset:2048""")
    waits = {0: 2, 2: 1, 4: 0}
    for p in range(5):
        if p in waits: a(f"  s_waitcnt vmcnt({waits[p]})")
        g = vG[p]
        a(f"""  v_lshlrev_b32 v6, 16, v{g}
  v_and_b32 v66, 0xffff0000, v{g}
  v_mul_f32 v6, v7, v6
  v_mul_f32 v66, v7, v66
  v_fract_f32 v6, v6
  v_fract_f32 v66, v66
  v_cos_f32 v6, v6
  v_cos_f32 v66, v66
  s_nop 0
  v_cvt_pk_bf16_f32 v{g}, v6, v66
  ds_write_b16 v{vP[2*p]}, v{g} offset:{2048 + CH*4}
  ds_write_b16_d16_hi v{vP[2*p+1]}, v{g} offset:{2048 + CH*4}""")
    st(7)
    a(f"""  s_mul_i32 s42, s2, {CH*4}
  s_add_u32 s43, s42, 16384
  s_add_u32 s44, s42, 32768
  s_mul_i32 s45, s2, {CH*2}
  s_add_u32 s45, s45, {hex(C_OFF)}
  s_sub_u32 s46, s45, 8192
  s_add_u32 s47, s45, 8192
  s_cmp_lt_u32 s38, 8
  s_cselect_b32 s44, s44, s46
  s_waitcnt lgkmcnt(0)
  s_barrier""")
    st(8)
    a(f"""  ds_read_b128 v[8:11], v1 offset:2048
  ds_read_b128 v[12:15], v1 offset:{2048+16384}
  ds_read_b128 v[16:19], v1 offset:{2048+32768}
  s_cmp_ge_u32 s38, 12
  s_cbranch_scc1 L_part_three
  ds_read_b128 v[20:23], v1 offset:{2048+49152}
  s_waitcnt lgkmcnt(0)
  buffer_store_dwordx4 v[20:23], v1, s[28:31], s47 offen{STF}
L_part_three:
  s_waitcnt lgkmcnt(0)
  buffer_store_dwordx4 v[8:11], v1, s[28:31], s42 offen{STF}
  buffer_store_dwordx4 v[12:15], v1, s[28:31], s43 offen{STF}
  buffer_store_dwordx4 v[16:19], v1, s[28:31], s44 offen{STF}""")
    st(9)
    if STAMP: a("  s_waitcnt vmcnt(0)")
    st(10)
    stamp_out(0, 70, 50, 38, 28, 6)
    a("L_part_end:\n  s_endpgm")

def k2():
    NSLOT = 17; RING = D + 2
    NW = BE // 64
    a.kernel("acc_kernel")
    sBase = [16 + i for i in range(NSLOT)]; sCnt = [33 + i for i in range(NSLOT)]
    vA = [20 + i for i in range(NSLOT)]; vC = [37 + i for i in range(NSLOT)]
    vM = lambda i: 96 + (i % RING) * 2
    st = lambda i: stamp(i, 95, 60)
    q = lambda j: f"quad_perm:[{j},{j},{j},{j}] row_mask:0xf bank_mask:0xf"
    if XMAP:
        a(f"""  s_cmp_ge_u32 s2, 256
  s_cbranch_scc1 L_acc_end
  s_and_b32 s3, s2, 7
  s_lshr_b32 s2, s2, 3
  s_mul_i32 s3, s3, 32
  s_add_u32 s2, s2, s3
  s_mul_i32 s3, s2, 250
  s_lshr_b32 s4, s3, 8
  s_add_u32 s3, s3, 250
  s_lshr_b32 s3, s3, 8
  s_cmp_eq_u32 s3, s4
  s_cbranch_scc1 L_acc_end
  s_mov_b32 s2, s4""")
    a(f"""  s_cmp_ge_u32 s2, {P}
  s_cbranch_scc1 L_acc_end
  s_load_dwordx2 s[16:17], s[0:1], 0
  s_load_dwordx2 s[18:19], s[0:1], 24
  s_load_dwordx2 s[20:21], s[0:1], 104
  s_load_dwordx2 s[84:85], s[0:1], 88
  s_load_dwordx2 s[86:87], s[0:1], 40
  s_load_dwordx4 s[88:91], s[0:1], 56
  s_load_dwordx4 s[92:95], s[0:1], 72""")
    if PRIO: a("  s_setprio 3")
    a(f"""  v_and_b32 v1, 63, v0
  v_readfirstlane_b32 s50, v0
  v_lshlrev_b32 v2, 2, v1
  v_lshlrev_b32 v3, 1, v1
  v_and_b32 v4, 3, v0
  v_lshlrev_b32 v5, 3, v4
  v_lshlrev_b32 v4, 1, v4
  v_lshlrev_b32 v70, 4, v0
  v_mov_b32 v76, 0
  v_mov_b32 v77, 0
  v_mov_b32 v78, 0
  v_mov_b32 v79, 0
  ds_write_b128 v70, v[76:79]
  ds_write_b128 v70, v[76:79] offset:16384
  s_lshr_b32 s50, s50, 6
  s_lshl_b32 s51, s2, 2
  v_lshlrev_b32 v71, 4, v1
  v_add_u32 v71, s50, v71
  v_lshlrev_b32 v72, 10, v71
  s_waitcnt lgkmcnt(0)""")
    if STAMP: a("  v_mov_b32 v95, 0")
    st(0)
    clk(14, 95, 60)
    a.srd(52, 20, NS * 1024, add=T_OFF)
    a(f"  buffer_load_dword v7, v72, s[52:55], s51 offen{RLD}")
    a.srd(4, 20, NS * CH * 4, add=A_OFF); a.srd(8, 20, NS * CH * 2, add=C_OFF); a.srd(12, 16, E * 8); a.srd(56, 18, E * 2)
    a(f"""  s_mul_i32 s51, s2, {BE}
  v_add_u32 v73, s51, v0
  v_lshlrev_b32 v74, 1, v73
  v_lshlrev_b32 v75, 3, v73
  s_cmp_ge_u32 s50, {NW}
  s_cbranch_scc1 L_acc_nofin0
  buffer_load_ushort v9, v74, s[56:59], 0 offen
  buffer_load_dwordx2 v[10:11], v75, s[12:15], 0 offen
L_acc_nofin0:""")
    for i in range(NSLOT): a(f"  v_mov_b32 v{vC[i]}, 0")
    a(f"""  v_lshlrev_b32 v68, 24, v4
  v_lshl_or_b32 v68, v4, 16, v68
  v_add_u32 v68, 0x01000c0c, v68
  s_mov_b32 s96, 0
  s_barrier
  s_cmp_ge_u32 s50, {NW}
  s_cbranch_scc1 L_acc_w0
  s_waitcnt vmcnt(2)
  s_branch L_acc_w1
L_acc_w0:
  s_waitcnt vmcnt(0)
L_acc_w1:""")
    st(1)
    a(f"""  v_mul_u32_u24 v71, {CH * 4}, v71
  v_and_b32 v6, 0xffff, v7
  v_lshrrev_b32 v7, 16, v7
  v_lshl_add_u32 v6, v6, 2, v71
L_acc_round:
  v_cmp_lt_u32 vcc, 64, v7
  v_readlane_b32 s51, v7, 16
  s_nop 1
  s_cmp_eq_u64 vcc, 0
  s_cbranch_scc1 L_acc_nospare
  s_cmp_lg_u32 s51, 0
  s_cbranch_scc1 L_acc_nospare
  s_ff1_i32_b64 s51, vcc
  s_nop 1
  v_readlane_b32 s97, v6, s51
  v_readlane_b32 s98, v7, s51
  s_nop 1
  s_add_u32 s97, s97, 256
  s_sub_u32 s98, s98, 64
  s_lshl_b64 vcc, 1, s51
  v_writelane_b32 v6, s97, 16
  v_writelane_b32 v7, s98, 16
  v_cndmask_b32 v7, v7, 64, vcc
L_acc_nospare:
  v_min_u32 v8, 64, v7
  s_nop 0""")
    for i in range(NSLOT):
        a(f"  v_readlane_b32 s{sBase[i]}, v6, {i}\n  v_readlane_b32 s{sCnt[i]}, v8, {i}")
    a("  v_sub_u32 v7, v7, v8\n  v_add_u32 v6, 256, v6")
    for i in range(NSLOT): a(f"  v_mov_b32 v{vA[i]}, -1")
    for i in range(NSLOT):
        a(f"""  v_cmp_gt_u32 vcc, s{sCnt[i]}, v1
  s_lshr_b32 s51, s{sBase[i]}, 1
  s_mov_b64 exec, vcc
  buffer_load_dword v{vA[i]}, v2, s[4:7], s{sBase[i]} offen{RLD}
  buffer_load_short_d16_hi v{vC[i]}, v3, s[8:11], s51 offen{RLD}
  s_mov_b64 exec, -1""")
    if PRIO: a("  s_setprio 0")
    if RBAR: a("  s_waitcnt vmcnt(0)\n  s_barrier")
    st(2)
    a(f"""  s_cmp_lg_u32 s96, 0
  s_cbranch_scc1 L_acc_now
  s_cmp_ge_u32 s50, {NW}
  s_cbranch_scc1 L_acc_now
  s_load_dwordx16 s[16:31], s[90:91], 0
  s_load_dwordx16 s[32:47], s[88:89], 0
  s_load_dwordx4 s[64:67], s[86:87], 0
L_acc_now:""")

    def GH():
        a(f"""  s_cmp_lg_u32 s96, 0
  s_cbranch_scc1 L_acc_nogh
  s_mov_b32 s96, 1
  s_cmp_ge_u32 s50, {NW}
  s_cbranch_scc1 L_acc_nogh
  s_waitcnt lgkmcnt(0)""")
        for base in (16, 32):
            for kp in range(4):
                for jp in range(2):
                    x = base + (2 * kp) * 2 + jp; y = base + (2 * kp + 1) * 2 + jp
                    a(f"  s_pack_ll_b32_b16 s51, s{x}, s{y}\n  s_pack_hh_b32_b16 s{y}, s{x}, s{y}\n  s_mov_b32 s{x}, s51")
        a("  v_lshlrev_b32 v9, 16, v9")
        NEG10 = f32hex(-10.0); LOG2E = f32hex(math.log2(math.e))
        for kp in range(4):
            c = 64 + kp
            a(f"""  s_lshl_b32 s51, s{c}, 16
  s_and_b32 s97, s{c}, 0xffff0000
  v_subrev_f32 v70, s51, v9
  v_subrev_f32 v71, s97, v9
  v_cvt_pk_bf16_f32 v72, v70, v71
  v_lshlrev_b32 v70, 16, v72
  v_and_b32 v71, 0xffff0000, v72
  v_mul_f32 v70, v70, v70
  v_mul_f32 v71, v71, v71
  v_cvt_pk_bf16_f32 v72, v70, v71
  v_lshlrev_b32 v70, 16, v72
  v_and_b32 v71, 0xffff0000, v72
  v_mul_f32 v70, {NEG10}, v70
  v_mul_f32 v71, {NEG10}, v71
  v_cvt_pk_bf16_f32 v72, v70, v71
  v_lshlrev_b32 v70, 16, v72
  v_and_b32 v71, 0xffff0000, v72
  v_mul_f32 v70, {LOG2E}, v70
  v_mul_f32 v71, {LOG2E}, v71
  v_exp_f32 v70, v70
  v_exp_f32 v71, v71
  s_nop 0
  v_cvt_pk_bf16_f32 v{80 + kp}, v70, v71""")
        for (base, dst) in ((16, 12), (32, 16)):
            for j in range(4):
                jp, hi = j // 2, j % 2
                for kp in range(4):
                    s = base + (2 * kp + hi) * 2 + jp
                    a(f"  v_dot2_f32_bf16 v{dst + j}, v{80 + kp}, s{s}, {'0' if kp == 0 else 'v%d' % (dst + j)}")
        a("""  s_nop 2
  v_cvt_pk_bf16_f32 v70, v16, v17
  v_cvt_pk_bf16_f32 v71, v18, v19
  v_lshlrev_b32 v16, 16, v70
  v_and_b32 v17, 0xffff0000, v70
  v_lshlrev_b32 v18, 16, v71
  v_and_b32 v19, 0xffff0000, v71
L_acc_nogh:""")
    def G(i):
        a(f"  v_and_b32 v70, 0x1fffff, v{vA[i]}\n  v_lshrrev_b32 v{vA[i]}, 16, v{vA[i]}")
        if NOGATHER: a(f"  v_or_b32 v70, 0x200000, v70")
        a(f"  buffer_load_dwordx2 v[{vM(i)}:{vM(i)+1}], v70, s[12:15], 0 offen{GLD}")
        a(f"  v_and_b32 v{vA[i]}, 0xffe0, v{vA[i]}")
    def A(i):
        if NOA:
            a(f"  v_add_u32 v88, v{vM(i)}, v88")
            return
        for j in range(4): a(f"  v_mov_b32_dpp v{72 + j}, v{vM(i)} {q(j)}")
        for j in range(4): a(f"  v_mov_b32_dpp v{88 + j}, v{vM(i)+1} {q(j)}")
        for j in range(4): a(f"  v_perm_b32 v{88 + j}, v{88 + j}, v{72 + j}, v68")
        for j in range(4): a(f"  v_add_u32_dpp v{84 + j}, v{vA[i]}, v5 {q(j)}")
        for j in range(4): a(f"  v_mul_f32_dpp v{88 + j}, v{vC[i]}, v{88 + j} {q(j)}")
        for j in range(4): a(f"  v_cvt_f64_f32 v[{76 + 2*j}:{77 + 2*j}], v{88 + j}")
        if not NOATOM:
            for j in range(4): a(f"  ds_add_f64 v{84 + j}, v[{76 + 2*j}:{77 + 2*j}]")
    st(3)
    for k in range(D):
        a(f"  s_waitcnt vmcnt({2 * (NSLOT - 1 - k) + k})")
        if k == 0: st(4)
        G(k)
    for i in range(NSLOT):
        if i + D < NSLOT:
            if i == 0: a(f"  s_waitcnt vmcnt({2 * (NSLOT - 1 - D) + D})")
            G(i + D)
            a(f"  s_waitcnt vmcnt({D})")
        else:
            a(f"  s_waitcnt vmcnt({NSLOT - 1 - i})")
        if i in (0, 4, 8, 12): st(5 + i // 4)
        A(i)
        if i == GH_AT: GH()
    st(9)
    a(f"""  v_cmp_lt_u32 vcc, 0, v7
  s_nop 1
  s_cmp_lg_u64 vcc, 0
  s_cbranch_scc1 L_acc_round
  s_waitcnt lgkmcnt(0)
  s_barrier""")
    st(10)
    a(f"""  s_cmp_ge_u32 s50, {NW}
  s_cbranch_scc1 L_acc_fin_skip
  v_lshlrev_b32 v70, 5, v0
  ds_read_b128 v[20:23], v70
  ds_read_b128 v[24:27], v70 offset:16
  s_load_dwordx8 s[68:75], s[92:93], 0
  s_load_dwordx8 s[76:83], s[94:95], 0
  s_waitcnt lgkmcnt(0)""")
    for i in range(8):
        a(f"  s_lshl_b32 s{16 + 2*i}, s{68 + i}, 16\n  s_and_b32 s{17 + 2*i}, s{68 + i}, 0xffff0000")
        a(f"  s_lshl_b32 s{32 + 2*i}, s{76 + i}, 16\n  s_and_b32 s{33 + 2*i}, s{76 + i}, 0xffff0000")
    a.srd(4, 84, E * 8)
    for i in range(4): a(f"  v_cvt_f32_f64 v{28 + i}, v[{20 + 2*i}:{21 + 2*i}]")
    for j in range(4):
        a(f"  v_mul_f32 v{32 + j}, s{16 + j}, v28")
        for i in range(1, 4): a(f"  v_fmac_f32 v{32 + j}, s{16 + 4*i + j}, v{28 + i}")
    for j in range(4): a(f"  v_mul_f32 v{32 + j}, v{32 + j}, v{12 + j}")
    for j in range(4):
        a(f"  v_mul_f32 v{36 + j}, s{32 + j}, v32")
        for i in range(1, 4): a(f"  v_fmac_f32 v{36 + j}, s{32 + 4*i + j}, v{32 + i}")
    a("""  v_lshlrev_b32 v40, 16, v10
  v_and_b32 v41, 0xffff0000, v10
  v_lshlrev_b32 v42, 16, v11
  v_and_b32 v43, 0xffff0000, v11
  v_fmac_f32 v40, v36, v16
  v_fmac_f32 v41, v37, v17
  v_fmac_f32 v42, v38, v18
  v_fmac_f32 v43, v39, v19""")
    r = {'S': 28, 'g': 12, 'h': 16}.get(DBG)
    if r is not None:
        for i in range(4): a(f"  v_mov_b32 v{40+i}, v{r+i}")
    a(f"""  v_cvt_pk_bf16_f32 v44, v40, v41
  v_cvt_pk_bf16_f32 v45, v42, v43
  s_mul_i32 s51, s2, {BE * 8}
  v_lshlrev_b32 v70, 3, v0
  buffer_store_dwordx2 v[44:45], v70, s[4:7], s51 offen
L_acc_fin_skip:""")
    if STAMP:
        a("  s_waitcnt vmcnt(0)")
        st(11)
        clk(15, 95, 60)
        a("  s_load_dwordx2 s[62:63], s[0:1], 104\n  s_waitcnt lgkmcnt(0)")
        a.srd(4, 62, S_OFF + 0x200000)
        stamp_out(1, 95, 60, 50, 4, 70)
    a("L_acc_end:\n  s_endpgm")
    return 96 + RING * 2

k1(); nv = k2()
a.descs([("part_kernel", 72, 64), ("acc_kernel", nv, 100)])
open(sys.argv[1], "w").write(a.text())
```

```python
import sys, os
from common import *

env = lambda k, d: type(d)(os.environ.get(k, d))
NS = 250; CH = 10240; BE = 640; P = 250
A_OFF = 0; C_OFF = 0x1000000; T_OFF = 0x2000000; S_OFF = 0x3000000
MAGIC = (2**32 + BE - 1) // BE
assert all(((i * MAGIC) >> 32) == i // BE for i in range(E))
K1_LDS = 2048 + CH * 6
K2_LDS = BE * 32
LDNT = env('LDNT', ' nt'); STF = env('STF', '')
RLD = env('RLD', '')
STAMP = env('STAMP', 0); DBG = env('DBG', '')
D = env('D', 4); GH_AT = env('GH_AT', 3); PRIO = env('PRIO', 1)
NOGATHER = env('NOGATHER', 0); NOATOM = env('NOATOM', 0); XMAP = env('XMAP', 0); SPAN = env('SPAN', 0); SPIN = env('SPIN', 0); NOA = env('NOA', 0); RBAR = env('RBAR', 0); GLD = env('GLD', '')

a = Asm()
a.header([("part_kernel", NS, 1024, K1_LDS), ("acc_kernel", 256 if XMAP else P, 1024, K2_LDS)])

def stamp(i, vreg, sp):
    if STAMP: a(f"  s_memrealtime s[{sp}:{sp+1}]\n  s_waitcnt lgkmcnt(0)\n  v_writelane_b32 v{vreg}, s{sp}, {i}")
def clk(i, vreg, sp):
    if STAMP: a(f"  s_memtime s[{sp}:{sp+1}]\n  s_waitcnt lgkmcnt(0)\n  v_writelane_b32 v{vreg}, s{sp}, {i}")
def stamp_out(kidx, vreg, sp, wavereg, srd, tmp):
    if STAMP: a(f"""  s_lshl_b32 s{sp}, s2, 4
  s_add_u32 s{sp}, s{sp}, s{wavereg}
  s_lshl_b32 s{sp}, s{sp}, 6
  s_add_u32 s{sp}, s{sp}, {hex(S_OFF + kidx * 0x100000)}
  v_and_b32 v{tmp}, 63, v0
  v_cmp_gt_u32 vcc, 16, v{tmp}
  v_lshlrev_b32 v{tmp}, 2, v{tmp}
  s_mov_b64 exec, vcc
  buffer_store_dword v{vreg}, v{tmp}, s[{srd}:{srd+3}], s{sp} offen
  s_mov_b64 exec, -1""")

def k1():
    a.kernel("part_kernel")
    vO = [8 + k for k in range(10)]; vI = [20 + k for k in range(10)]; vG = [30, 31, 32, 33, 34]
    vL = [36 + k for k in range(10)]; vR = [46 + k for k in range(10)]; vP = [56 + k for k in range(10)]
    st = lambda i: stamp(i, 70, 50)
    a(f"""  s_cmp_ge_u32 s2, {NS}
  s_cbranch_scc1 L_part_end
  s_memrealtime s[52:53]
  s_load_dwordx4 s[4:7], s[0:1], 8
  s_load_dwordx2 s[8:9], s[0:1], 32
  s_load_dwordx2 s[10:11], s[0:1], 48
  s_load_dwordx2 s[12:13], s[0:1], 104
  v_lshlrev_b32 v1, 4, v0
  v_lshlrev_b32 v2, 3, v0
  v_lshlrev_b32 v3, 2, v0
  v_mov_b32 v4, 0
  v_mov_b32 v5, 1
  ds_write_b32 v3, v4
  v_readfirstlane_b32 s38, v0
  s_mul_i32 s32, s2, {CH*4}
  s_add_u32 s33, s32, 16384
  s_add_u32 s34, s32, 32768
  s_mul_i32 s35, s2, {CH*2}
  s_add_u32 s36, s35, 8192
  s_add_u32 s37, s35, 16384
  s_lshr_b32 s38, s38, 6
  s_movk_i32 s40, {-BE}
  s_waitcnt lgkmcnt(0)""")
    if STAMP: a("  v_mov_b32 v70, 0")
    st(0)
    a.srd(16, 6, T * 4); a.srd(20, 4, T * 4); a.srd(24, 8, T * 2)
    a(f"""  s_load_dword s39, s[10:11], 0
  buffer_load_dwordx4 v[8:11], v1, s[16:19], s32 offen{LDNT}
  buffer_load_dwordx4 v[12:15], v1, s[16:19], s33 offen{LDNT}
  buffer_load_dwordx2 v[16:17], v2, s[16:19], s34 offen{LDNT}
  buffer_load_dwordx4 v[20:23], v1, s[20:23], s32 offen{LDNT}
  buffer_load_dwordx4 v[24:27], v1, s[20:23], s33 offen{LDNT}
  buffer_load_dwordx2 v[28:29], v2, s[20:23], s34 offen{LDNT}
  buffer_load_dwordx2 v[30:31], v2, s[24:27], s35 offen{LDNT}
  buffer_load_dwordx2 v[32:33], v2, s[24:27], s36 offen{LDNT}
  buffer_load_dword v34, v3, s[24:27], s37 offen{LDNT}""")
    a.srd(28, 12, 0x4000000 if SPAN else (S_OFF + 0x200000) if STAMP else (T_OFF + NS * 1024))
    if SPAN:
        a("""  s_cmp_lg_u32 s2, 0
  s_cbranch_scc1 L_nospan
  v_mov_b32 v60, s52
  v_mov_b32 v61, s53
  v_mov_b32 v62, 0x3800000
  buffer_store_dwordx2 v[60:61], v62, s[28:31], 0 offen
L_nospan:""")
    a("  s_barrier")
    for g, (lo, hi) in enumerate([(0, 4), (4, 8), (8, 10)]):
        a(f"  s_waitcnt vmcnt({8-g})")
        st(1 + g)
        for k in range(lo, hi):
            a(f"""  v_mul_hi_u32_u24 v6, {hex(MAGIC)}, v{vO[k]}
  v_mad_i32_i24 v{vL[k]}, v6, s40, v{vO[k]}
  v_lshlrev_b32 v{vO[k]}, 2, v6
  ds_add_rtn_u32 v{vR[k]}, v{vO[k]}, v5""")
    st(4)
    a(f"""  s_waitcnt lgkmcnt(0)
  s_barrier
  s_cmp_lg_u32 s38, 0
  s_cbranch_scc1 L_part_noscan
  ds_read_b128 v[56:59], v1
  s_waitcnt lgkmcnt(0)
  v_add_u32 v60, v56, v57
  v_add_u32 v61, v60, v58
  v_add_u32 v62, v61, v59
  v_mov_b32 v63, v62""")
    for sh in (1, 2, 4, 8):
        a(f"  s_nop 1\n  v_add_u32_dpp v63, v63, v63 row_shr:{sh} row_mask:0xf bank_mask:0xf bound_ctrl:0")
    a(f"""  s_nop 1
  v_add_u32_dpp v63, v63, v63 row_bcast:15 row_mask:0xa bank_mask:0xf
  s_nop 1
  v_add_u32_dpp v63, v63, v63 row_bcast:31 row_mask:0xc bank_mask:0xf
  v_sub_u32 v64, v63, v62
  v_add_u32 v65, v64, v56
  v_add_u32 v66, v64, v60
  v_add_u32 v67, v64, v61
  ds_write_b128 v1, v[64:67] offset:1024
  v_lshl_or_b32 v56, v56, 16, v64
  v_lshl_or_b32 v57, v57, 16, v65
  v_lshl_or_b32 v58, v58, 16, v66
  v_lshl_or_b32 v59, v59, 16, v67
  s_lshl_b32 s41, s2, 10
  s_add_u32 s41, s41, {hex(T_OFF)}
  buffer_store_dwordx4 v[56:59], v1, s[28:31], s41 offen{STF}
  s_waitcnt lgkmcnt(0)
L_part_noscan:
  s_barrier""")
    st(5)
    for k in range(10): a(f"  ds_read_b32 v{vP[k]}, v{vO[k]} offset:1024")
    a(f"""  s_lshl_b32 s39, s39, 16
  v_mov_b32 v7, s39
  v_mul_f32 v7, 0.15915494, v7""")
    for g, (lo, hi) in enumerate([(0, 4), (4, 8), (8, 10)]):
        a(f"  s_waitcnt vmcnt({5-g})")
        for k in range(lo, hi):
            a(f"  v_lshlrev_b32 v{vI[k]}, 3, v{vI[k]}\n  v_lshl_or_b32 v{vI[k]}, v{vL[k]}, 21, v{vI[k]}")
    st(6)
    a("  s_waitcnt lgkmcnt(0)")
    for k in range(10):
        a(f"""  v_add_u32 v{vP[k]}, v{vP[k]}, v{vR[k]}
  v_lshlrev_b32 v{vR[k]}, 2, v{vP[k]}
  v_lshlrev_b32 v{vP[k]}, 1, v{vP[k]}
  ds_write_b32 v{vR[k]}, v{vI[k]} offset:2048""")
    waits = {0: 2, 2: 1, 4: 0}
    for p in range(5):
        if p in waits: a(f"  s_waitcnt vmcnt({waits[p]})")
        g = vG[p]
        a(f"""  v_lshlrev_b32 v6, 16, v{g}
  v_and_b32 v66, 0xffff0000, v{g}
  v_mul_f32 v6, v7, v6
  v_mul_f32 v66, v7, v66
  v_fract_f32 v6, v6
  v_fract_f32 v66, v66
  v_cos_f32 v6, v6
  v_cos_f32 v66, v66
  s_nop 0
  v_cvt_pk_bf16_f32 v{g}, v6, v66
  ds_write_b16 v{vP[2*p]}, v{g} offset:{2048 + CH*4}
  ds_write_b16_d16_hi v{vP[2*p+1]}, v{g} offset:{2048 + CH*4}""")
    st(7)
    a(f"""  s_mul_i32 s42, s2, {CH*4}
  s_add_u32 s43, s42, 16384
  s_add_u32 s44, s42, 32768
  s_mul_i32 s45, s2, {CH*2}
  s_add_u32 s45, s45, {hex(C_OFF)}
  s_sub_u32 s46, s45, 8192
  s_add_u32 s47, s45, 8192
  s_cmp_lt_u32 s38, 8
  s_cselect_b32 s44, s44, s46
  s_waitcnt lgkmcnt(0)
  s_barrier""")
    st(8)
    a(f"""  ds_read_b128 v[8:11], v1 offset:2048
  ds_read_b128 v[12:15], v1 offset:{2048+16384}
  ds_read_b128 v[16:19], v1 offset:{2048+32768}
  s_cmp_ge_u32 s38, 12
  s_cbranch_scc1 L_part_three
  ds_read_b128 v[20:23], v1 offset:{2048+49152}
  s_waitcnt lgkmcnt(0)
  buffer_store_dwordx4 v[20:23], v1, s[28:31], s47 offen{STF}
L_part_three:
  s_waitcnt lgkmcnt(0)
  buffer_store_dwordx4 v[8:11], v1, s[28:31], s42 offen{STF}
  buffer_store_dwordx4 v[12:15], v1, s[28:31], s43 offen{STF}
  buffer_store_dwordx4 v[16:19], v1, s[28:31], s44 offen{STF}""")
    st(9)
    if STAMP: a("  s_waitcnt vmcnt(0)")
    st(10)
    stamp_out(0, 70, 50, 38, 28, 6)
    a("L_part_end:\n  s_endpgm")

def k2():
    NSLOT = 17; RING = D + 2
    NW = BE // 64
    a.kernel("acc_kernel")
    sBase = [16 + i for i in range(NSLOT)]; sCnt = [33 + i for i in range(NSLOT)]
    vA = [20 + i for i in range(NSLOT)]; vC = [37 + i for i in range(NSLOT)]
    vM = lambda i: 96 + (i % RING) * 2
    st = lambda i: stamp(i, 95, 60)
    q = lambda j: f"quad_perm:[{j},{j},{j},{j}] row_mask:0xf bank_mask:0xf"
    if XMAP:
        a(f"""  s_cmp_ge_u32 s2, 256
  s_cbranch_scc1 L_acc_end
  s_and_b32 s3, s2, 7
  s_lshr_b32 s2, s2, 3
  s_mul_i32 s3, s3, 32
  s_add_u32 s2, s2, s3
  s_mul_i32 s3, s2, 250
  s_lshr_b32 s4, s3, 8
  s_add_u32 s3, s3, 250
  s_lshr_b32 s3, s3, 8
  s_cmp_eq_u32 s3, s4
  s_cbranch_scc1 L_acc_end
  s_mov_b32 s2, s4""")
    a(f"""  s_cmp_ge_u32 s2, {P}
  s_cbranch_scc1 L_acc_end
  s_load_dwordx2 s[16:17], s[0:1], 0
  s_load_dwordx2 s[18:19], s[0:1], 24
  s_load_dwordx2 s[20:21], s[0:1], 104
  s_load_dwordx2 s[84:85], s[0:1], 88
  s_load_dwordx2 s[86:87], s[0:1], 40
  s_load_dwordx4 s[88:91], s[0:1], 56
  s_load_dwordx4 s[92:95], s[0:1], 72""")
    if PRIO: a("  s_setprio 3")
    a(f"""  v_and_b32 v1, 63, v0
  v_readfirstlane_b32 s50, v0
  v_lshlrev_b32 v2, 2, v1
  v_lshlrev_b32 v3, 1, v1
  v_and_b32 v4, 3, v0
  v_lshlrev_b32 v5, 3, v4
  v_lshlrev_b32 v4, 1, v4
  v_lshlrev_b32 v70, 4, v0
  v_mov_b32 v76, 0
  v_mov_b32 v77, 0
  v_mov_b32 v78, 0
  v_mov_b32 v79, 0
  ds_write_b128 v70, v[76:79]
  ds_write_b128 v70, v[76:79] offset:16384
  s_lshr_b32 s50, s50, 6
  s_lshl_b32 s51, s2, 2
  v_lshlrev_b32 v71, 4, v1
  v_add_u32 v71, s50, v71
  v_lshlrev_b32 v72, 10, v71
  s_waitcnt lgkmcnt(0)""")
    if STAMP: a("  v_mov_b32 v95, 0")
    st(0)
    clk(14, 95, 60)
    a.srd(52, 20, NS * 1024, add=T_OFF)
    a(f"  buffer_load_dword v7, v72, s[52:55], s51 offen{RLD}")
    a.srd(4, 20, NS * CH * 4, add=A_OFF); a.srd(8, 20, NS * CH * 2, add=C_OFF); a.srd(12, 16, E * 8); a.srd(56, 18, E * 2)
    a(f"""  s_mul_i32 s51, s2, {BE}
  v_add_u32 v73, s51, v0
  v_lshlrev_b32 v74, 1, v73
  v_lshlrev_b32 v75, 3, v73
  s_cmp_ge_u32 s50, {NW}
  s_cbranch_scc1 L_acc_nofin0
  buffer_load_ushort v9, v74, s[56:59], 0 offen
  buffer_load_dwordx2 v[10:11], v75, s[12:15], 0 offen
L_acc_nofin0:""")
    for i in range(NSLOT): a(f"  v_mov_b32 v{vC[i]}, 0")
    a(f"""  v_lshlrev_b32 v68, 24, v4
  v_lshl_or_b32 v68, v4, 16, v68
  v_add_u32 v68, 0x01000c0c, v68
  s_mov_b32 s96, 0
  s_barrier
  s_cmp_ge_u32 s50, {NW}
  s_cbranch_scc1 L_acc_w0
  s_waitcnt vmcnt(2)
  s_branch L_acc_w1
L_acc_w0:
  s_waitcnt vmcnt(0)
L_acc_w1:""")
    st(1)
    a(f"""  v_mul_u32_u24 v71, {CH * 4}, v71
  v_and_b32 v6, 0xffff, v7
  v_lshrrev_b32 v7, 16, v7
  v_lshl_add_u32 v6, v6, 2, v71
L_acc_round:
  v_cmp_lt_u32 vcc, 64, v7
  v_readlane_b32 s51, v7, 16
  s_nop 1
  s_cmp_eq_u64 vcc, 0
  s_cbranch_scc1 L_acc_nospare
  s_cmp_lg_u32 s51, 0
  s_cbranch_scc1 L_acc_nospare
  s_ff1_i32_b64 s51, vcc
  s_nop 1
  v_readlane_b32 s97, v6, s51
  v_readlane_b32 s98, v7, s51
  s_nop 1
  s_add_u32 s97, s97, 256
  s_sub_u32 s98, s98, 64
  s_lshl_b64 vcc, 1, s51
  v_writelane_b32 v6, s97, 16
  v_writelane_b32 v7, s98, 16
  v_cndmask_b32 v7, v7, 64, vcc
L_acc_nospare:
  v_min_u32 v8, 64, v7
  s_nop 0""")
    for i in range(NSLOT):
        a(f"  v_readlane_b32 s{sBase[i]}, v6, {i}\n  v_readlane_b32 s{sCnt[i]}, v8, {i}")
    a("  v_sub_u32 v7, v7, v8\n  v_add_u32 v6, 256, v6")
    for i in range(NSLOT): a(f"  v_mov_b32 v{vA[i]}, -1")
    for i in range(NSLOT):
        a(f"""  v_cmp_gt_u32 vcc, s{sCnt[i]}, v1
  s_lshr_b32 s51, s{sBase[i]}, 1
  s_mov_b64 exec, vcc
  buffer_load_dword v{vA[i]}, v2, s[4:7], s{sBase[i]} offen{RLD}
  buffer_load_short_d16_hi v{vC[i]}, v3, s[8:11], s51 offen{RLD}
  s_mov_b64 exec, -1""")
    if PRIO: a("  s_setprio 0")
    if RBAR: a("  s_waitcnt vmcnt(0)\n  s_barrier")
    st(2)
    a(f"""  s_cmp_lg_u32 s96, 0
  s_cbranch_scc1 L_acc_now
  s_cmp_ge_u32 s50, {NW}
  s_cbranch_scc1 L_acc_now
  s_load_dwordx16 s[16:31], s[90:91], 0
  s_load_dwordx16 s[32:47], s[88:89], 0
  s_load_dwordx4 s[64:67], s[86:87], 0
L_acc_now:""")

    def GH():
        a(f"""  s_cmp_lg_u32 s96, 0
  s_cbranch_scc1 L_acc_nogh
  s_mov_b32 s96, 1
  s_cmp_ge_u32 s50, {NW}
  s_cbranch_scc1 L_acc_nogh
  s_waitcnt lgkmcnt(0)""")
        for base in (16, 32):
            for kp in range(4):
                for jp in range(2):
                    x = base + (2 * kp) * 2 + jp; y = base + (2 * kp + 1) * 2 + jp
                    a(f"  s_pack_ll_b32_b16 s51, s{x}, s{y}\n  s_pack_hh_b32_b16 s{y}, s{x}, s{y}\n  s_mov_b32 s{x}, s51")
        a("  v_lshlrev_b32 v9, 16, v9")
        NEG10 = f32hex(-10.0); LOG2E = f32hex(math.log2(math.e))
        for kp in range(4):
            c = 64 + kp
            a(f"""  s_lshl_b32 s51, s{c}, 16
  s_and_b32 s97, s{c}, 0xffff0000
  v_subrev_f32 v70, s51, v9
  v_subrev_f32 v71, s97, v9
  v_cvt_pk_bf16_f32 v72, v70, v71
  v_lshlrev_b32 v70, 16, v72
  v_and_b32 v71, 0xffff0000, v72
  v_mul_f32 v70, v70, v70
  v_mul_f32 v71, v71, v71
  v_cvt_pk_bf16_f32 v72, v70, v71
  v_lshlrev_b32 v70, 16, v72
  v_and_b32 v71, 0xffff0000, v72
  v_mul_f32 v70, {NEG10}, v70
  v_mul_f32 v71, {NEG10}, v71
  v_cvt_pk_bf16_f32 v72, v70, v71
  v_lshlrev_b32 v70, 16, v72
  v_and_b32 v71, 0xffff0000, v72
  v_mul_f32 v70, {LOG2E}, v70
  v_mul_f32 v71, {LOG2E}, v71
  v_exp_f32 v70, v70
  v_exp_f32 v71, v71
  s_nop 0
  v_cvt_pk_bf16_f32 v{80 + kp}, v70, v71""")
        for (base, dst) in ((16, 12), (32, 16)):
            for j in range(4):
                jp, hi = j // 2, j % 2
                for kp in range(4):
                    s = base + (2 * kp + hi) * 2 + jp
                    a(f"  v_dot2_f32_bf16 v{dst + j}, v{80 + kp}, s{s}, {'0' if kp == 0 else 'v%d' % (dst + j)}")
        a("""  s_nop 2
  v_cvt_pk_bf16_f32 v70, v16, v17
  v_cvt_pk_bf16_f32 v71, v18, v19
  v_lshlrev_b32 v16, 16, v70
  v_and_b32 v17, 0xffff0000, v70
  v_lshlrev_b32 v18, 16, v71
  v_and_b32 v19, 0xffff0000, v71
L_acc_nogh:""")
    def G(i):
        a(f"  v_and_b32 v70, 0x1fffff, v{vA[i]}\n  v_lshrrev_b32 v{vA[i]}, 16, v{vA[i]}")
        if NOGATHER: a(f"  v_or_b32 v70, 0x200000, v70")
        a(f"  buffer_load_dwordx2 v[{vM(i)}:{vM(i)+1}], v70, s[12:15], 0 offen{GLD}")
        a(f"  v_and_b32 v{vA[i]}, 0xffe0, v{vA[i]}")
    def A(i):
        if NOA:
            a(f"  v_add_u32 v88, v{vM(i)}, v88")
            return
        for j in range(4): a(f"  v_mov_b32_dpp v{72 + j}, v{vM(i)} {q(j)}")
        for j in range(4): a(f"  v_mov_b32_dpp v{88 + j}, v{vM(i)+1} {q(j)}")
        for j in range(4): a(f"  v_perm_b32 v{88 + j}, v{88 + j}, v{72 + j}, v68")
        for j in range(4): a(f"  v_add_u32_dpp v{84 + j}, v{vA[i]}, v5 {q(j)}")
        for j in range(4): a(f"  v_mul_f32_dpp v{88 + j}, v{vC[i]}, v{88 + j} {q(j)}")
        for j in range(4): a(f"  v_cvt_f64_f32 v[{76 + 2*j}:{77 + 2*j}], v{88 + j}")
        if not NOATOM:
            for j in range(4): a(f"  ds_add_f64 v{84 + j}, v[{76 + 2*j}:{77 + 2*j}]")
    st(3)
    for k in range(D):
        a(f"  s_waitcnt vmcnt({2 * (NSLOT - 1 - k) + k})")
        if k == 0: st(4)
        G(k)
    for i in range(NSLOT):
        if i + D < NSLOT:
            if i == 0: a(f"  s_waitcnt vmcnt({2 * (NSLOT - 1 - D) + D})")
            G(i + D)
            a(f"  s_waitcnt vmcnt({D})")
        else:
            a(f"  s_waitcnt vmcnt({NSLOT - 1 - i})")
        if i in (0, 4, 8, 12): st(5 + i // 4)
        A(i)
        if i == GH_AT: GH()
    st(9)
    a(f"""  v_cmp_lt_u32 vcc, 0, v7
  s_nop 1
  s_cmp_lg_u64 vcc, 0
  s_cbranch_scc1 L_acc_round
  s_waitcnt lgkmcnt(0)
  s_barrier""")
    st(10)
    a(f"""  s_cmp_ge_u32 s50, {NW}
  s_cbranch_scc1 L_acc_fin_skip
  v_lshlrev_b32 v70, 5, v0
  ds_read_b128 v[20:23], v70
  ds_read_b128 v[24:27], v70 offset:16
  s_load_dwordx8 s[68:75], s[92:93], 0
  s_load_dwordx8 s[76:83], s[94:95], 0
  s_waitcnt lgkmcnt(0)""")
    for i in range(8):
        a(f"  s_lshl_b32 s{16 + 2*i}, s{68 + i}, 16\n  s_and_b32 s{17 + 2*i}, s{68 + i}, 0xffff0000")
        a(f"  s_lshl_b32 s{32 + 2*i}, s{76 + i}, 16\n  s_and_b32 s{33 + 2*i}, s{76 + i}, 0xffff0000")
    a.srd(4, 84, E * 8)
    for i in range(4): a(f"  v_cvt_f32_f64 v{28 + i}, v[{20 + 2*i}:{21 + 2*i}]")
    for j in range(4):
        a(f"  v_mul_f32 v{32 + j}, s{16 + j}, v28")
        for i in range(1, 4): a(f"  v_fmac_f32 v{32 + j}, s{16 + 4*i + j}, v{28 + i}")
    for j in range(4): a(f"  v_mul_f32 v{32 + j}, v{32 + j}, v{12 + j}")
    for j in range(4):
        a(f"  v_mul_f32 v{36 + j}, s{32 + j}, v32")
        for i in range(1, 4): a(f"  v_fmac_f32 v{36 + j}, s{32 + 4*i + j}, v{32 + i}")
    a("""  v_lshlrev_b32 v40, 16, v10
  v_and_b32 v41, 0xffff0000, v10
  v_lshlrev_b32 v42, 16, v11
  v_and_b32 v43, 0xffff0000, v11
  v_fmac_f32 v40, v36, v16
  v_fmac_f32 v41, v37, v17
  v_fmac_f32 v42, v38, v18
  v_fmac_f32 v43, v39, v19""")
    r = {'S': 28, 'g': 12, 'h': 16}.get(DBG)
    if r is not None:
        for i in range(4): a(f"  v_mov_b32 v{40+i}, v{r+i}")
    a(f"""  v_cvt_pk_bf16_f32 v44, v40, v41
  v_cvt_pk_bf16_f32 v45, v42, v43
  s_mul_i32 s51, s2, {BE * 8}
  v_lshlrev_b32 v70, 3, v0
  buffer_store_dwordx2 v[44:45], v70, s[4:7], s51 offen
L_acc_fin_skip:""")
    if STAMP:
        a("  s_waitcnt vmcnt(0)")
        st(11)
        clk(15, 95, 60)
        a("  s_load_dwordx2 s[62:63], s[0:1], 104\n  s_waitcnt lgkmcnt(0)")
        a.srd(4, 62, S_OFF + 0x200000)
        stamp_out(1, 95, 60, 50, 4, 70)
    if SPAN:
        a(f"""  s_load_dwordx2 s[62:63], s[0:1], 104
  s_waitcnt vmcnt(0) lgkmcnt(0)
  s_add_u32 s62, s62, 0x3800000
  s_addc_u32 s63, s63, 0
  s_load_dwordx2 s[64:65], s[62:63], 0
  s_memrealtime s[60:61]
  s_waitcnt lgkmcnt(0)
  s_sub_u32 s66, s60, s64
  s_mul_i32 s66, s66, {SPAN - 1}
L_span:
  s_memrealtime s[62:63]
  s_waitcnt lgkmcnt(0)
  s_sub_u32 s64, s62, s60
  s_cmp_lt_u32 s64, s66
  s_cbranch_scc1 L_span""")
    if SPIN:
        a(f"""  s_cmp_lg_u32 s2, 0
  s_cbranch_scc1 L_acc_end
  s_memtime s[60:61]
  s_waitcnt lgkmcnt(0)
L_spin:
  s_memtime s[62:63]
  s_waitcnt lgkmcnt(0)
  s_sub_u32 s64, s62, s60
  s_cmp_lt_u32 s64, {SPIN}
  s_cbranch_scc1 L_spin""")
    a("L_acc_end:\n  s_endpgm")
    return 96 + RING * 2

k1(); nv = k2()
a.descs([("part_kernel", 72, 64), ("acc_kernel", nv, 100)])
open(sys.argv[1], "w").write(a.text())
```

```python
import sys, os
from common import *

env = lambda k, d: type(d)(os.environ.get(k, d))
NS = 250; CH = 10240; BE = 640; P = 250
A_OFF = 0; C_OFF = 0x1000000; T_OFF = 0x2000000; S_OFF = 0x3000000
MAGIC = (2**32 + BE - 1) // BE
assert all(((i * MAGIC) >> 32) == i // BE for i in range(E))
K1_LDS = 2048 + CH * 6
K2_LDS = BE * 32
LDNT = env('LDNT', ' nt'); STF = env('STF', '')
RLD = env('RLD', '')
STAMP = env('STAMP', 0); DBG = env('DBG', '')
D = env('D', 4); GH_AT = env('GH_AT', 3); PRIO = env('PRIO', 1)
NOGATHER = env('NOGATHER', 0); NOATOM = env('NOATOM', 0); XMAP = env('XMAP', 0); DR = env('DR', 0); FAIR = env('FAIR', 0); MPRE = env('MPRE', 0); SPAN = env('SPAN', 0); SPIN = env('SPIN', 0); NOA = env('NOA', 0); RBAR = env('RBAR', 0); GLD = env('GLD', '')

a = Asm()
a.header([("part_kernel", NS, 1024, K1_LDS), ("acc_kernel", 256 if XMAP else P, 1024, K2_LDS)])

def stamp(i, vreg, sp):
    if STAMP: a(f"  s_memrealtime s[{sp}:{sp+1}]\n  s_waitcnt lgkmcnt(0)\n  v_writelane_b32 v{vreg}, s{sp}, {i}")
def clk(i, vreg, sp):
    if STAMP: a(f"  s_memtime s[{sp}:{sp+1}]\n  s_waitcnt lgkmcnt(0)\n  v_writelane_b32 v{vreg}, s{sp}, {i}")
def stamp_out(kidx, vreg, sp, wavereg, srd, tmp):
    if STAMP: a(f"""  s_lshl_b32 s{sp}, s2, 4
  s_add_u32 s{sp}, s{sp}, s{wavereg}
  s_lshl_b32 s{sp}, s{sp}, 6
  s_add_u32 s{sp}, s{sp}, {hex(S_OFF + kidx * 0x100000)}
  v_and_b32 v{tmp}, 63, v0
  v_cmp_gt_u32 vcc, 16, v{tmp}
  v_lshlrev_b32 v{tmp}, 2, v{tmp}
  s_mov_b64 exec, vcc
  buffer_store_dword v{vreg}, v{tmp}, s[{srd}:{srd+3}], s{sp} offen
  s_mov_b64 exec, -1""")

def k1():
    a.kernel("part_kernel")
    vO = [8 + k for k in range(10)]; vI = [20 + k for k in range(10)]; vG = [30, 31, 32, 33, 34]
    vL = [36 + k for k in range(10)]; vR = [46 + k for k in range(10)]; vP = [56 + k for k in range(10)]
    st = lambda i: stamp(i, 70, 50)
    a(f"""  s_cmp_ge_u32 s2, {NS}
  s_cbranch_scc1 L_part_end
  s_memrealtime s[52:53]
  s_load_dwordx4 s[4:7], s[0:1], 8
  s_load_dwordx2 s[8:9], s[0:1], 32
  s_load_dwordx2 s[10:11], s[0:1], 48
  s_load_dwordx2 s[12:13], s[0:1], 104
  v_lshlrev_b32 v1, 4, v0
  v_lshlrev_b32 v2, 3, v0
  v_lshlrev_b32 v3, 2, v0
  v_mov_b32 v4, 0
  v_mov_b32 v5, 1
  ds_write_b32 v3, v4
  v_readfirstlane_b32 s38, v0
  s_mul_i32 s32, s2, {CH*4}
  s_add_u32 s33, s32, 16384
  s_add_u32 s34, s32, 32768
  s_mul_i32 s35, s2, {CH*2}
  s_add_u32 s36, s35, 8192
  s_add_u32 s37, s35, 16384
  s_lshr_b32 s38, s38, 6
  s_movk_i32 s40, {-BE}
  s_waitcnt lgkmcnt(0)""")
    if STAMP: a("  v_mov_b32 v70, 0")
    st(0)
    a.srd(16, 6, T * 4); a.srd(20, 4, T * 4); a.srd(24, 8, T * 2)
    a(f"""  s_load_dword s39, s[10:11], 0
  buffer_load_dwordx4 v[8:11], v1, s[16:19], s32 offen{LDNT}
  buffer_load_dwordx4 v[12:15], v1, s[16:19], s33 offen{LDNT}
  buffer_load_dwordx2 v[16:17], v2, s[16:19], s34 offen{LDNT}
  buffer_load_dwordx4 v[20:23], v1, s[20:23], s32 offen{LDNT}
  buffer_load_dwordx4 v[24:27], v1, s[20:23], s33 offen{LDNT}
  buffer_load_dwordx2 v[28:29], v2, s[20:23], s34 offen{LDNT}
  buffer_load_dwordx2 v[30:31], v2, s[24:27], s35 offen{LDNT}
  buffer_load_dwordx2 v[32:33], v2, s[24:27], s36 offen{LDNT}
  buffer_load_dword v34, v3, s[24:27], s37 offen{LDNT}""")
    X = 0
    if MPRE == 3:
        X = 1
        a("  s_load_dwordx2 s[48:49], s[0:1], 0\n  s_waitcnt lgkmcnt(0)")
        a.srd(52, 48, E * 8)
        a(f"""  s_lshr_b32 s48, s2, 3
  s_mul_i32 s48, s48, {313 * 128}
  v_lshlrev_b32 v6, 7, v0
  v_mov_b32 v68, 0x7fffff00
  v_cmp_gt_u32 vcc, 313, v0
  s_nop 1
  v_cndmask_b32 v6, v68, v6, vcc
  buffer_load_dword v69, v6, s[52:55], s48 offen""")
    a.srd(28, 12, 0x4000000 if SPAN else (S_OFF + 0x200000) if STAMP else (T_OFF + NS * 1024))
    if SPAN:
        a("""  s_cmp_lg_u32 s2, 0
  s_cbranch_scc1 L_nospan
  v_mov_b32 v60, s52
  v_mov_b32 v61, s53
  v_mov_b32 v62, 0x3800000
  buffer_store_dwordx2 v[60:61], v62, s[28:31], 0 offen
L_nospan:""")
    a("  s_barrier")
    for g, (lo, hi) in enumerate([(0, 4), (4, 8), (8, 10)]):
        a(f"  s_waitcnt vmcnt({8-g+X})")
        st(1 + g)
        for k in range(lo, hi):
            a(f"""  v_mul_hi_u32_u24 v6, {hex(MAGIC)}, v{vO[k]}
  v_mad_i32_i24 v{vL[k]}, v6, s40, v{vO[k]}
  v_lshlrev_b32 v{vO[k]}, 2, v6
  ds_add_rtn_u32 v{vR[k]}, v{vO[k]}, v5""")
    st(4)
    a(f"""  s_waitcnt lgkmcnt(0)
  s_barrier
  s_cmp_lg_u32 s38, 0
  s_cbranch_scc1 L_part_noscan
  ds_read_b128 v[56:59], v1
  s_waitcnt lgkmcnt(0)
  v_add_u32 v60, v56, v57
  v_add_u32 v61, v60, v58
  v_add_u32 v62, v61, v59
  v_mov_b32 v63, v62""")
    for sh in (1, 2, 4, 8):
        a(f"  s_nop 1\n  v_add_u32_dpp v63, v63, v63 row_shr:{sh} row_mask:0xf bank_mask:0xf bound_ctrl:0")
    a(f"""  s_nop 1
  v_add_u32_dpp v63, v63, v63 row_bcast:15 row_mask:0xa bank_mask:0xf
  s_nop 1
  v_add_u32_dpp v63, v63, v63 row_bcast:31 row_mask:0xc bank_mask:0xf
  v_sub_u32 v64, v63, v62
  v_add_u32 v65, v64, v56
  v_add_u32 v66, v64, v60
  v_add_u32 v67, v64, v61
  ds_write_b128 v1, v[64:67] offset:1024
  v_lshl_or_b32 v56, v56, 16, v64
  v_lshl_or_b32 v57, v57, 16, v65
  v_lshl_or_b32 v58, v58, 16, v66
  v_lshl_or_b32 v59, v59, 16, v67
  s_lshl_b32 s41, s2, 10
  s_add_u32 s41, s41, {hex(T_OFF)}
  buffer_store_dwordx4 v[56:59], v1, s[28:31], s41 offen{STF}
  s_waitcnt lgkmcnt(0)
L_part_noscan:
  s_barrier""")
    st(5)
    for k in range(10): a(f"  ds_read_b32 v{vP[k]}, v{vO[k]} offset:1024")
    a(f"""  s_lshl_b32 s39, s39, 16
  v_mov_b32 v7, s39
  v_mul_f32 v7, 0.15915494, v7""")
    for g, (lo, hi) in enumerate([(0, 4), (4, 8), (8, 10)]):
        a(f"  s_waitcnt vmcnt({5-g+X})")
        for k in range(lo, hi):
            a(f"  v_lshlrev_b32 v{vI[k]}, 3, v{vI[k]}\n  v_lshl_or_b32 v{vI[k]}, v{vL[k]}, 21, v{vI[k]}")
    st(6)
    a("  s_waitcnt lgkmcnt(0)")
    for k in range(10):
        a(f"""  v_add_u32 v{vP[k]}, v{vP[k]}, v{vR[k]}
  v_lshlrev_b32 v{vR[k]}, 2, v{vP[k]}
  v_lshlrev_b32 v{vP[k]}, 1, v{vP[k]}
  ds_write_b32 v{vR[k]}, v{vI[k]} offset:2048""")
    waits = {0: 2, 2: 1, 4: 0}
    for p in range(5):
        if p in waits: a(f"  s_waitcnt vmcnt({waits[p]+X})")
        g = vG[p]
        a(f"""  v_lshlrev_b32 v6, 16, v{g}
  v_and_b32 v66, 0xffff0000, v{g}
  v_mul_f32 v6, v7, v6
  v_mul_f32 v66, v7, v66
  v_fract_f32 v6, v6
  v_fract_f32 v66, v66
  v_cos_f32 v6, v6
  v_cos_f32 v66, v66
  s_nop 0
  v_cvt_pk_bf16_f32 v{g}, v6, v66
  ds_write_b16 v{vP[2*p]}, v{g} offset:{2048 + CH*4}
  ds_write_b16_d16_hi v{vP[2*p+1]}, v{g} offset:{2048 + CH*4}""")
    st(7)
    a(f"""  s_mul_i32 s42, s2, {CH*4}
  s_add_u32 s43, s42, 16384
  s_add_u32 s44, s42, 32768
  s_mul_i32 s45, s2, {CH*2}
  s_add_u32 s45, s45, {hex(C_OFF)}
  s_sub_u32 s46, s45, 8192
  s_add_u32 s47, s45, 8192
  s_cmp_lt_u32 s38, 8
  s_cselect_b32 s44, s44, s46
  s_waitcnt lgkmcnt(0)
  s_barrier""")
    st(8)
    a(f"""  ds_read_b128 v[8:11], v1 offset:2048
  ds_read_b128 v[12:15], v1 offset:{2048+16384}
  ds_read_b128 v[16:19], v1 offset:{2048+32768}
  s_cmp_ge_u32 s38, 12
  s_cbranch_scc1 L_part_three
  ds_read_b128 v[20:23], v1 offset:{2048+49152}
  s_waitcnt lgkmcnt(0)
  buffer_store_dwordx4 v[20:23], v1, s[28:31], s47 offen{STF}
L_part_three:
  s_waitcnt lgkmcnt(0)
  buffer_store_dwordx4 v[8:11], v1, s[28:31], s42 offen{STF}
  buffer_store_dwordx4 v[12:15], v1, s[28:31], s43 offen{STF}
  buffer_store_dwordx4 v[16:19], v1, s[28:31], s44 offen{STF}""")
    if MPRE == 1:
        a("  s_load_dwordx2 s[48:49], s[0:1], 0\n  s_waitcnt lgkmcnt(0)")
        a.srd(52, 48, E * 8)
        a(f"""  s_lshr_b32 s48, s2, 3
  s_mul_i32 s48, s48, {313 * 128}
  v_lshlrev_b32 v6, 7, v0
  v_cmp_gt_u32 vcc, 313, v0
  s_mov_b64 exec, vcc
  buffer_load_dword v7, v6, s[52:55], s48 offen
  s_mov_b64 exec, -1""")
    st(9)
    if STAMP: a("  s_waitcnt vmcnt(0)")
    st(10)
    stamp_out(0, 70, 50, 38, 28, 6)
    a("L_part_end:\n  s_endpgm")

def k2():
    NSLOT = 17; RING = D + 2
    NW = BE // 64
    a.kernel("acc_kernel")
    sBase = [16 + i for i in range(NSLOT)]; sCnt = [33 + i for i in range(NSLOT)]
    vA = [20 + i for i in range(NSLOT)]; vC = [37 + i for i in range(NSLOT)]
    vM = lambda i: 96 + (i % RING) * 2
    st = lambda i: stamp(i, 95, 100)
    q = lambda j: f"quad_perm:[{j},{j},{j},{j}] row_mask:0xf bank_mask:0xf"
    a("  s_mov_b32 s99, s2")
    if XMAP:
        a(f"""  s_cmp_ge_u32 s2, 256
  s_cbranch_scc1 L_acc_end
  s_and_b32 s3, s2, 7
  s_lshr_b32 s2, s2, 3
  s_mul_i32 s3, s3, 32
  s_add_u32 s2, s2, s3
  s_mul_i32 s3, s2, 250
  s_lshr_b32 s4, s3, 8
  s_add_u32 s3, s3, 250
  s_lshr_b32 s3, s3, 8
  s_cmp_eq_u32 s3, s4
  s_cbranch_scc1 L_acc_end
  s_mov_b32 s2, s4""")
    a(f"""  s_cmp_ge_u32 s2, {P}
  s_cbranch_scc1 L_acc_end
  s_load_dwordx2 s[16:17], s[0:1], 0
  s_load_dwordx2 s[18:19], s[0:1], 24
  s_load_dwordx2 s[20:21], s[0:1], 104
  s_load_dwordx2 s[84:85], s[0:1], 88
  s_load_dwordx2 s[86:87], s[0:1], 40
  s_load_dwordx4 s[88:91], s[0:1], 56
  s_load_dwordx4 s[92:95], s[0:1], 72""")
    if PRIO: a("  s_setprio 3")
    a(f"""  v_and_b32 v1, 63, v0
  v_readfirstlane_b32 s50, v0
  v_lshlrev_b32 v2, 2, v1
  v_lshlrev_b32 v3, 1, v1
  v_and_b32 v4, 3, v0
  v_lshlrev_b32 v5, 3, v4
  v_lshlrev_b32 v4, 1, v4
  v_lshlrev_b32 v70, 4, v0
  v_mov_b32 v76, 0
  v_mov_b32 v77, 0
  v_mov_b32 v78, 0
  v_mov_b32 v79, 0
  ds_write_b128 v70, v[76:79]
  ds_write_b128 v70, v[76:79] offset:16384
  s_lshr_b32 s50, s50, 6
  s_lshl_b32 s51, s2, 2
  v_lshlrev_b32 v71, 4, v1
  v_add_u32 v71, s50, v71
  v_lshlrev_b32 v72, 10, v71
  s_waitcnt lgkmcnt(0)""")
    if STAMP: a("  v_mov_b32 v95, 0")
    st(0)
    clk(14, 95, 100)
    a.srd(52, 20, NS * 1024, add=T_OFF)
    a(f"  buffer_load_dword v7, v72, s[52:55], s51 offen{RLD}")
    a.srd(4, 20, NS * CH * 4, add=A_OFF); a.srd(8, 20, NS * CH * 2, add=C_OFF); a.srd(12, 16, E * 8); a.srd(56, 18, E * 2)
    if MPRE == 2:
        a(f"""  s_lshr_b32 s51, s99, 3
  s_mul_i32 s51, s51, {313 * 128}
  v_lshlrev_b32 v73, 7, v0
  s_cmp_ge_u32 s50, 5
  s_cbranch_scc1 L_acc_nopre
  v_cmp_gt_u32 vcc, 313, v0
  s_mov_b64 exec, vcc
  buffer_load_dword v69, v73, s[12:15], s51 offen
  s_mov_b64 exec, -1
L_acc_nopre:""")
    a(f"""  s_mul_i32 s51, s2, {BE}
  v_add_u32 v73, s51, v0
  v_lshlrev_b32 v74, 1, v73
  v_lshlrev_b32 v75, 3, v73
  s_cmp_ge_u32 s50, {NW}
  s_cbranch_scc1 L_acc_nofin0
  buffer_load_ushort v9, v74, s[56:59], 0 offen
  buffer_load_dwordx2 v[10:11], v75, s[12:15], 0 offen
L_acc_nofin0:""")
    for i in range(NSLOT): a(f"  v_mov_b32 v{vC[i]}, 0")
    a(f"""  v_lshlrev_b32 v68, 24, v4
  v_lshl_or_b32 v68, v4, 16, v68
  v_add_u32 v68, 0x01000c0c, v68
  s_mov_b32 s96, 0
  s_barrier
  s_cmp_ge_u32 s50, {NW}
  s_cbranch_scc1 L_acc_w0
  s_cmp_lt_u32 s50, 5
  s_cbranch_scc1 L_acc_w2
  s_waitcnt vmcnt(2)
  s_branch L_acc_w1
L_acc_w2:
  s_waitcnt vmcnt({3 if MPRE == 2 else 2})
  s_branch L_acc_w1
L_acc_w0:
  s_waitcnt vmcnt(0)
L_acc_w1:""")
    st(1)
    a(f"""  v_mul_u32_u24 v71, {CH * 4}, v71
  v_and_b32 v6, 0xffff, v7
  v_lshrrev_b32 v7, 16, v7
  v_lshl_add_u32 v6, v6, 2, v71
L_acc_round:
  v_cmp_lt_u32 vcc, 64, v7
  v_readlane_b32 s51, v7, 16
  s_nop 1
  s_cmp_eq_u64 vcc, 0
  s_cbranch_scc1 L_acc_nospare
  s_cmp_lg_u32 s51, 0
  s_cbranch_scc1 L_acc_nospare
  s_ff1_i32_b64 s51, vcc
  s_nop 1
  v_readlane_b32 s97, v6, s51
  v_readlane_b32 s98, v7, s51
  s_nop 1
  s_add_u32 s97, s97, 256
  s_sub_u32 s98, s98, 64
  s_lshl_b64 vcc, 1, s51
  v_writelane_b32 v6, s97, 16
  v_writelane_b32 v7, s98, 16
  v_cndmask_b32 v7, v7, 64, vcc
L_acc_nospare:
  v_min_u32 v8, 64, v7
  s_nop 0""")
    for i in range(NSLOT):
        a(f"  v_readlane_b32 s{sBase[i]}, v6, {i}\n  v_readlane_b32 s{sCnt[i]}, v8, {i}")
    a("  v_sub_u32 v7, v7, v8\n  v_add_u32 v6, 256, v6")
    for i in range(NSLOT): a(f"  v_mov_b32 v{vA[i]}, -1")
    def R(i):
        a(f"""  v_cmp_gt_u32 vcc, s{sCnt[i]}, v1
  s_lshr_b32 s51, s{sBase[i]}, 1
  s_mov_b64 exec, vcc
  buffer_load_dword v{vA[i]}, v2, s[4:7], s{sBase[i]} offen{RLD}
  buffer_load_short_d16_hi v{vC[i]}, v3, s[8:11], s51 offen{RLD}
  s_mov_b64 exec, -1""")
    for i in range(DR if DR else NSLOT): R(i)
    if PRIO: a("  s_setprio 0" if not FAIR else "  s_setprio 3")
    if RBAR: a("  s_waitcnt vmcnt(0)\n  s_barrier")
    st(2)
    a(f"""  s_cmp_lg_u32 s96, 0
  s_cbranch_scc1 L_acc_now
  s_cmp_ge_u32 s50, {NW}
  s_cbranch_scc1 L_acc_now
  s_load_dwordx16 s[52:67], s[90:91], 0
  s_load_dwordx16 s[68:83], s[88:89], 0
  s_load_dwordx4 s[88:91], s[86:87], 0
L_acc_now:""")

    def GH():
        a(f"""  s_cmp_lg_u32 s96, 0
  s_cbranch_scc1 L_acc_nogh
  s_mov_b32 s96, 1
  s_cmp_ge_u32 s50, {NW}
  s_cbranch_scc1 L_acc_nogh
  s_waitcnt lgkmcnt(0)""")
        for base in (52, 68):
            for kp in range(4):
                for jp in range(2):
                    x = base + (2 * kp) * 2 + jp; y = base + (2 * kp + 1) * 2 + jp
                    a(f"  s_pack_ll_b32_b16 s51, s{x}, s{y}\n  s_pack_hh_b32_b16 s{y}, s{x}, s{y}\n  s_mov_b32 s{x}, s51")
        a("  v_lshlrev_b32 v9, 16, v9")
        NEG10 = f32hex(-10.0); LOG2E = f32hex(math.log2(math.e))
        for kp in range(4):
            c = 88 + kp
            a(f"""  s_lshl_b32 s51, s{c}, 16
  s_and_b32 s97, s{c}, 0xffff0000
  v_subrev_f32 v70, s51, v9
  v_subrev_f32 v71, s97, v9
  v_cvt_pk_bf16_f32 v72, v70, v71
  v_lshlrev_b32 v70, 16, v72
  v_and_b32 v71, 0xffff0000, v72
  v_mul_f32 v70, v70, v70
  v_mul_f32 v71, v71, v71
  v_cvt_pk_bf16_f32 v72, v70, v71
  v_lshlrev_b32 v70, 16, v72
  v_and_b32 v71, 0xffff0000, v72
  v_mul_f32 v70, {NEG10}, v70
  v_mul_f32 v71, {NEG10}, v71
  v_cvt_pk_bf16_f32 v72, v70, v71
  v_lshlrev_b32 v70, 16, v72
  v_and_b32 v71, 0xffff0000, v72
  v_mul_f32 v70, {LOG2E}, v70
  v_mul_f32 v71, {LOG2E}, v71
  v_exp_f32 v70, v70
  v_exp_f32 v71, v71
  s_nop 0
  v_cvt_pk_bf16_f32 v{80 + kp}, v70, v71""")
        for (base, dst) in ((52, 12), (68, 16)):
            for j in range(4):
                jp, hi = j // 2, j % 2
                for kp in range(4):
                    s = base + (2 * kp + hi) * 2 + jp
                    a(f"  v_dot2_f32_bf16 v{dst + j}, v{80 + kp}, s{s}, {'0' if kp == 0 else 'v%d' % (dst + j)}")
        a("""  s_nop 2
  v_cvt_pk_bf16_f32 v70, v16, v17
  v_cvt_pk_bf16_f32 v71, v18, v19
  v_lshlrev_b32 v16, 16, v70
  v_and_b32 v17, 0xffff0000, v70
  v_lshlrev_b32 v18, 16, v71
  v_and_b32 v19, 0xffff0000, v71
L_acc_nogh:""")
    def G(i):
        a(f"  v_and_b32 v70, 0x1fffff, v{vA[i]}\n  v_lshrrev_b32 v{vA[i]}, 16, v{vA[i]}")
        if NOGATHER: a(f"  v_or_b32 v70, 0x200000, v70")
        a(f"  buffer_load_dwordx2 v[{vM(i)}:{vM(i)+1}], v70, s[12:15], 0 offen{GLD}")
        a(f"  v_and_b32 v{vA[i]}, 0xffe0, v{vA[i]}")
    def A(i):
        if NOA:
            a(f"  v_add_u32 v88, v{vM(i)}, v88")
            return
        for j in range(4): a(f"  v_mov_b32_dpp v{72 + j}, v{vM(i)} {q(j)}")
        for j in range(4): a(f"  v_mov_b32_dpp v{88 + j}, v{vM(i)+1} {q(j)}")
        for j in range(4): a(f"  v_perm_b32 v{88 + j}, v{88 + j}, v{72 + j}, v68")
        for j in range(4): a(f"  v_add_u32_dpp v{84 + j}, v{vA[i]}, v5 {q(j)}")
        for j in range(4): a(f"  v_mul_f32_dpp v{88 + j}, v{vC[i]}, v{88 + j} {q(j)}")
        for j in range(4): a(f"  v_cvt_f64_f32 v[{76 + 2*j}:{77 + 2*j}], v{88 + j}")
        if not NOATOM:
            for j in range(4): a(f"  ds_add_f64 v{84 + j}, v[{76 + 2*j}:{77 + 2*j}]")
    st(3)
    if not DR:
        for k in range(D):
            a(f"  s_waitcnt vmcnt({2 * (NSLOT - 1 - k) + k})")
            if k == 0: st(4)
            G(k)
        for i in range(NSLOT):
            if i + D < NSLOT:
                if i == 0: a(f"  s_waitcnt vmcnt({2 * (NSLOT - 1 - D) + D})")
                G(i + D)
                a(f"  s_waitcnt vmcnt({D})")
            else:
                a(f"  s_waitcnt vmcnt({NSLOT - 1 - i})")
            if i in (0, 4, 8, 12): st(5 + i // 4)
            if FAIR and i in (4, 8, 12): a(f"  s_setprio {3 - i // 4}")
            A(i)
            if i == GH_AT: GH()
    else:
        log = [('R', i) for i in range(DR) for _ in range(2)]
        def wait_for(kind, i):
            last = max(k for k, e in enumerate(log) if e == (kind, i))
            a(f"  s_waitcnt vmcnt({len(log) - 1 - last})")
        for k in range(D):
            wait_for('R', k)
            if k == 0: st(4)
            G(k); log.append(('G', k))
        for i in range(NSLOT):
            if i + DR < NSLOT:
                R(i + DR); log += [('R', i + DR)] * 2
            if i + D < NSLOT:
                wait_for('R', i + D)
                G(i + D); log.append(('G', i + D))
            wait_for('G', i)
            if i in (0, 4, 8, 12): st(5 + i // 4)
            if FAIR and i in (4, 8, 12): a(f"  s_setprio {3 - i // 4}")
            A(i)
            if i == GH_AT: GH()
    st(9)
    a(f"""  v_cmp_lt_u32 vcc, 0, v7
  s_nop 1
  s_cmp_lg_u64 vcc, 0
  s_cbranch_scc1 L_acc_round
  s_waitcnt lgkmcnt(0)
  s_barrier""")
    st(10)
    a(f"""  s_cmp_ge_u32 s50, {NW}
  s_cbranch_scc1 L_acc_fin_skip
  v_lshlrev_b32 v70, 5, v0
  ds_read_b128 v[20:23], v70
  ds_read_b128 v[24:27], v70 offset:16
  s_load_dwordx8 s[68:75], s[92:93], 0
  s_load_dwordx8 s[76:83], s[94:95], 0
  s_waitcnt lgkmcnt(0)""")
    for i in range(8):
        a(f"  s_lshl_b32 s{16 + 2*i}, s{68 + i}, 16\n  s_and_b32 s{17 + 2*i}, s{68 + i}, 0xffff0000")
        a(f"  s_lshl_b32 s{32 + 2*i}, s{76 + i}, 16\n  s_and_b32 s{33 + 2*i}, s{76 + i}, 0xffff0000")
    a.srd(4, 84, E * 8)
    for i in range(4): a(f"  v_cvt_f32_f64 v{28 + i}, v[{20 + 2*i}:{21 + 2*i}]")
    for j in range(4):
        a(f"  v_mul_f32 v{32 + j}, s{16 + j}, v28")
        for i in range(1, 4): a(f"  v_fmac_f32 v{32 + j}, s{16 + 4*i + j}, v{28 + i}")
    for j in range(4): a(f"  v_mul_f32 v{32 + j}, v{32 + j}, v{12 + j}")
    for j in range(4):
        a(f"  v_mul_f32 v{36 + j}, s{32 + j}, v32")
        for i in range(1, 4): a(f"  v_fmac_f32 v{36 + j}, s{32 + 4*i + j}, v{32 + i}")
    a("""  v_lshlrev_b32 v40, 16, v10
  v_and_b32 v41, 0xffff0000, v10
  v_lshlrev_b32 v42, 16, v11
  v_and_b32 v43, 0xffff0000, v11
  v_fmac_f32 v40, v36, v16
  v_fmac_f32 v41, v37, v17
  v_fmac_f32 v42, v38, v18
  v_fmac_f32 v43, v39, v19""")
    r = {'S': 28, 'g': 12, 'h': 16}.get(DBG)
    if r is not None:
        for i in range(4): a(f"  v_mov_b32 v{40+i}, v{r+i}")
    a(f"""  v_cvt_pk_bf16_f32 v44, v40, v41
  v_cvt_pk_bf16_f32 v45, v42, v43
  s_mul_i32 s51, s2, {BE * 8}
  v_lshlrev_b32 v70, 3, v0
  buffer_store_dwordx2 v[44:45], v70, s[4:7], s51 offen
L_acc_fin_skip:""")
    if STAMP:
        a("  s_waitcnt vmcnt(0)")
        st(11)
        clk(15, 95, 100)
        a("  s_load_dwordx2 s[62:63], s[0:1], 104\n  s_waitcnt lgkmcnt(0)")
        a.srd(4, 62, S_OFF + 0x200000)
        stamp_out(1, 95, 100, 50, 4, 70)
    if SPAN:
        a(f"""  s_load_dwordx2 s[62:63], s[0:1], 104
  s_waitcnt vmcnt(0) lgkmcnt(0)
  s_add_u32 s62, s62, 0x3800000
  s_addc_u32 s63, s63, 0
  s_load_dwordx2 s[64:65], s[62:63], 0
  s_memrealtime s[60:61]
  s_waitcnt lgkmcnt(0)
  s_sub_u32 s66, s60, s64
  s_mul_i32 s66, s66, {SPAN - 1}
L_span:
  s_memrealtime s[62:63]
  s_waitcnt lgkmcnt(0)
  s_sub_u32 s64, s62, s60
  s_cmp_lt_u32 s64, s66
  s_cbranch_scc1 L_span""")
    if SPIN:
        a(f"""  s_cmp_lg_u32 s2, 0
  s_cbranch_scc1 L_acc_end
  s_memtime s[60:61]
  s_waitcnt lgkmcnt(0)
L_spin:
  s_memtime s[62:63]
  s_waitcnt lgkmcnt(0)
  s_sub_u32 s64, s62, s60
  s_cmp_lt_u32 s64, {SPIN}
  s_cbranch_scc1 L_spin""")
    a("L_acc_end:\n  s_endpgm")
    return 96 + RING * 2

k1(); nv = k2()
a.descs([("part_kernel", 72, 64), ("acc_kernel", nv, 102)])
open(sys.argv[1], "w").write(a.text())
```

```python
import sys, os
from common import *

env = lambda k, d: type(d)(os.environ.get(k, d))
NS = 250; CH = 10240; BE = 640; P = 250; NW = BE // 64
A_OFF = 0; C_OFF = 0x1000000; T_OFF = 0x2000000; S_OFF = 0x3000000
MAGIC = (2**32 + BE - 1) // BE
assert all(((i * MAGIC) >> 32) == i // BE for i in range(E))
K1_LDS = 2048 + CH * 6
K2_LDS = BE * 32
LDNT = env('LDNT', ' nt'); STF = env('STF', ' sc0 sc1'); RLD = env('RLD', ''); OST = env('OST', '')
STAMP = env('STAMP', 0); DBG = env('DBG', '')
D = env('D', 3); PRIO = env('PRIO', 1); NOA = env('NOA', 0); NOGATHER = env('NOGATHER', 0)
OOB = 0x7fffff00

a = Asm()
a.header([("part_kernel", NS, 1024, K1_LDS), ("acc_kernel", 256, 1024, K2_LDS)])

def stamp(i, vreg, sp):
    if STAMP: a(f"  s_memrealtime s[{sp}:{sp+1}]\n  s_waitcnt lgkmcnt(0)\n  v_writelane_b32 v{vreg}, s{sp}, {i}")
def clk(i, vreg, sp):
    if STAMP: a(f"  s_memtime s[{sp}:{sp+1}]\n  s_waitcnt lgkmcnt(0)\n  v_writelane_b32 v{vreg}, s{sp}, {i}")
def stamp_out(kidx, vreg, sp, wavereg, srd, tmp):
    if STAMP: a(f"""  s_lshl_b32 s{sp}, s2, 4
  s_add_u32 s{sp}, s{sp}, s{wavereg}
  s_lshl_b32 s{sp}, s{sp}, 6
  s_add_u32 s{sp}, s{sp}, {hex(S_OFF + kidx * 0x100000)}
  v_and_b32 v{tmp}, 63, v0
  v_cmp_gt_u32 vcc, 16, v{tmp}
  v_lshlrev_b32 v{tmp}, 2, v{tmp}
  s_mov_b64 exec, vcc
  buffer_store_dword v{vreg}, v{tmp}, s[{srd}:{srd+3}], s{sp} offen
  s_mov_b64 exec, -1""")

def k1():
    a.kernel("part_kernel")
    vO = [8 + k for k in range(10)]; vI = [20 + k for k in range(10)]; vG = [30, 31, 32, 33, 34]
    vL = [36 + k for k in range(10)]; vR = [46 + k for k in range(10)]; vP = [56 + k for k in range(10)]
    st = lambda i: stamp(i, 70, 50)
    a(f"""  s_cmp_ge_u32 s2, {NS}
  s_cbranch_scc1 L_part_end
  s_load_dwordx4 s[4:7], s[0:1], 8
  s_load_dwordx2 s[8:9], s[0:1], 32
  s_load_dwordx2 s[10:11], s[0:1], 48
  s_load_dwordx2 s[12:13], s[0:1], 104
  v_lshlrev_b32 v1, 4, v0
  v_lshlrev_b32 v2, 3, v0
  v_lshlrev_b32 v3, 2, v0
  v_mov_b32 v4, 0
  v_mov_b32 v5, 1
  ds_write_b32 v3, v4
  v_readfirstlane_b32 s38, v0
  s_mul_i32 s32, s2, {CH*4}
  s_add_u32 s33, s32, 16384
  s_add_u32 s34, s32, 32768
  s_mul_i32 s35, s2, {CH*2}
  s_add_u32 s36, s35, 8192
  s_add_u32 s37, s35, 16384
  s_lshr_b32 s38, s38, 6
  s_movk_i32 s40, {-BE}
  s_waitcnt lgkmcnt(0)""")
    if STAMP: a("  v_mov_b32 v70, 0")
    st(0)
    a.srd(16, 6, T * 4); a.srd(20, 4, T * 4); a.srd(24, 8, T * 2)
    a(f"""  s_load_dword s39, s[10:11], 0
  buffer_load_dwordx4 v[8:11], v1, s[16:19], s32 offen{LDNT}
  buffer_load_dwordx4 v[12:15], v1, s[16:19], s33 offen{LDNT}
  buffer_load_dwordx2 v[16:17], v2, s[16:19], s34 offen{LDNT}
  buffer_load_dwordx4 v[20:23], v1, s[20:23], s32 offen{LDNT}
  buffer_load_dwordx4 v[24:27], v1, s[20:23], s33 offen{LDNT}
  buffer_load_dwordx2 v[28:29], v2, s[20:23], s34 offen{LDNT}
  buffer_load_dwordx2 v[30:31], v2, s[24:27], s35 offen{LDNT}
  buffer_load_dwordx2 v[32:33], v2, s[24:27], s36 offen{LDNT}
  buffer_load_dword v34, v3, s[24:27], s37 offen{LDNT}""")
    a.srd(28, 12, (S_OFF + 0x200000) if STAMP else (T_OFF + NS * 1024))
    a("  s_barrier")
    for g, (lo, hi) in enumerate([(0, 4), (4, 8), (8, 10)]):
        a(f"  s_waitcnt vmcnt({8-g})")
        st(1 + g)
        for k in range(lo, hi):
            a(f"""  v_mul_hi_u32_u24 v6, {hex(MAGIC)}, v{vO[k]}
  v_mad_i32_i24 v{vL[k]}, v6, s40, v{vO[k]}
  v_lshlrev_b32 v{vO[k]}, 2, v6
  ds_add_rtn_u32 v{vR[k]}, v{vO[k]}, v5""")
    st(4)
    a(f"""  s_waitcnt lgkmcnt(0)
  s_barrier
  s_cmp_lg_u32 s38, 0
  s_cbranch_scc1 L_part_noscan
  ds_read_b128 v[56:59], v1
  s_waitcnt lgkmcnt(0)
  v_add_u32 v60, v56, v57
  v_add_u32 v61, v60, v58
  v_add_u32 v62, v61, v59
  v_mov_b32 v63, v62""")
    for sh in (1, 2, 4, 8):
        a(f"  s_nop 1\n  v_add_u32_dpp v63, v63, v63 row_shr:{sh} row_mask:0xf bank_mask:0xf bound_ctrl:0")
    a(f"""  s_nop 1
  v_add_u32_dpp v63, v63, v63 row_bcast:15 row_mask:0xa bank_mask:0xf
  s_nop 1
  v_add_u32_dpp v63, v63, v63 row_bcast:31 row_mask:0xc bank_mask:0xf
  v_sub_u32 v64, v63, v62
  v_add_u32 v65, v64, v56
  v_add_u32 v66, v64, v60
  v_add_u32 v67, v64, v61
  ds_write_b128 v1, v[64:67] offset:1024
  v_lshl_or_b32 v56, v56, 16, v64
  v_lshl_or_b32 v57, v57, 16, v65
  v_lshl_or_b32 v58, v58, 16, v66
  v_lshl_or_b32 v59, v59, 16, v67
  s_lshl_b32 s41, s2, 10
  s_add_u32 s41, s41, {hex(T_OFF)}
  buffer_store_dwordx4 v[56:59], v1, s[28:31], s41 offen{STF}
  s_waitcnt lgkmcnt(0)
L_part_noscan:
  s_barrier""")
    st(5)
    for k in range(10): a(f"  ds_read_b32 v{vP[k]}, v{vO[k]} offset:1024")
    a(f"""  s_lshl_b32 s39, s39, 16
  v_mov_b32 v7, s39
  v_mul_f32 v7, 0.15915494, v7""")
    for g, (lo, hi) in enumerate([(0, 4), (4, 8), (8, 10)]):
        a(f"  s_waitcnt vmcnt({5-g})")
        for k in range(lo, hi):
            a(f"  v_lshlrev_b32 v{vI[k]}, 3, v{vI[k]}\n  v_lshl_or_b32 v{vI[k]}, v{vL[k]}, 21, v{vI[k]}")
    st(6)
    a("  s_waitcnt lgkmcnt(0)")
    for k in range(10):
        a(f"""  v_add_u32 v{vP[k]}, v{vP[k]}, v{vR[k]}
  v_lshlrev_b32 v{vR[k]}, 2, v{vP[k]}
  v_lshlrev_b32 v{vP[k]}, 1, v{vP[k]}
  ds_write_b32 v{vR[k]}, v{vI[k]} offset:2048""")
    waits = {0: 2, 2: 1, 4: 0}
    for p in range(5):
        if p in waits: a(f"  s_waitcnt vmcnt({waits[p]})")
        g = vG[p]
        a(f"""  v_lshlrev_b32 v6, 16, v{g}
  v_and_b32 v66, 0xffff0000, v{g}
  v_mul_f32 v6, v7, v6
  v_mul_f32 v66, v7, v66
  v_fract_f32 v6, v6
  v_fract_f32 v66, v66
  v_cos_f32 v6, v6
  v_cos_f32 v66, v66
  s_nop 0
  v_cvt_pk_bf16_f32 v{g}, v6, v66
  ds_write_b16 v{vP[2*p]}, v{g} offset:{2048 + CH*4}
  ds_write_b16_d16_hi v{vP[2*p+1]}, v{g} offset:{2048 + CH*4}""")
    st(7)
    a(f"""  s_mul_i32 s42, s2, {CH*4}
  s_add_u32 s43, s42, 16384
  s_add_u32 s44, s42, 32768
  s_mul_i32 s45, s2, {CH*2}
  s_add_u32 s45, s45, {hex(C_OFF)}
  s_sub_u32 s46, s45, 8192
  s_add_u32 s47, s45, 8192
  s_cmp_lt_u32 s38, 8
  s_cselect_b32 s44, s44, s46
  s_waitcnt lgkmcnt(0)
  s_barrier""")
    st(8)
    a(f"""  ds_read_b128 v[8:11], v1 offset:2048
  ds_read_b128 v[12:15], v1 offset:{2048+16384}
  ds_read_b128 v[16:19], v1 offset:{2048+32768}
  s_cmp_ge_u32 s38, 12
  s_cbranch_scc1 L_part_three
  ds_read_b128 v[20:23], v1 offset:{2048+49152}
  s_waitcnt lgkmcnt(0)
  buffer_store_dwordx4 v[20:23], v1, s[28:31], s47 offen{STF}
L_part_three:
  s_waitcnt lgkmcnt(0)
  buffer_store_dwordx4 v[8:11], v1, s[28:31], s42 offen{STF}
  buffer_store_dwordx4 v[12:15], v1, s[28:31], s43 offen{STF}
  buffer_store_dwordx4 v[16:19], v1, s[28:31], s44 offen{STF}""")
    st(9)
    if STAMP: a("  s_waitcnt vmcnt(0)")
    st(10)
    stamp_out(0, 70, 50, 38, 28, 6)
    a("L_part_end:\n  s_endpgm")

def k2():
    RING = D + 2
    a.kernel("acc_kernel")
    vA = lambda j, k: 20 + 4 * j + k
    vC = lambda j: 36 + 2 * j
    vCnt = lambda j: 44 + j
    vAdr = lambda j: 48 + j
    vRem = lambda j: 52 + j
    vM = lambda i: 96 + (i % RING) * 2
    vG_, vH_, vMR, vDist = 12, 16, 10, 9
    WD, WU = 20, 36
    st = lambda i: stamp(i, 95, 100)
    q = lambda j: f"quad_perm:[{j},{j},{j},{j}] row_mask:0xf bank_mask:0xf"
    a(f"""  s_cmp_ge_u32 s2, 256
  s_cbranch_scc1 L_acc_end
  s_and_b32 s3, s2, 7
  s_lshr_b32 s2, s2, 3
  s_mul_i32 s3, s3, 32
  s_add_u32 s2, s2, s3
  s_mul_i32 s3, s2, 250
  s_lshr_b32 s4, s3, 8
  s_add_u32 s3, s3, 250
  s_lshr_b32 s3, s3, 8
  s_cmp_eq_u32 s3, s4
  s_cbranch_scc1 L_acc_end
  s_mov_b32 s2, s4
  s_load_dwordx2 s[52:53], s[0:1], 104
  s_load_dwordx2 s[54:55], s[0:1], 0
  s_load_dwordx2 s[56:57], s[0:1], 24
  s_load_dwordx2 s[58:59], s[0:1], 88
  s_load_dwordx2 s[60:61], s[0:1], 40
  s_load_dwordx4 s[64:67], s[0:1], 56
  s_load_dwordx4 s[68:71], s[0:1], 72""")
    if PRIO: a("  s_setprio 3")
    a(f"""  v_and_b32 v1, 63, v0
  v_readfirstlane_b32 s96, v0
  v_and_b32 v4, 3, v0
  v_lshlrev_b32 v5, 3, v4
  v_lshlrev_b32 v4, 1, v4
  v_lshlrev_b32 v70, 4, v0
  v_mov_b32 v76, 0
  v_mov_b32 v77, 0
  v_mov_b32 v78, 0
  v_mov_b32 v79, 0
  ds_write_b128 v70, v[76:79]
  ds_write_b128 v70, v[76:79] offset:16384
  s_lshr_b32 s96, s96, 6
  s_lshl_b32 s97, s2, 2
  v_lshrrev_b32 v2, 4, v1
  v_lshlrev_b32 v2, 4, v2
  v_add_u32 v2, s96, v2
  v_and_b32 v3, 15, v1
  v_lshlrev_b32 v3, 2, v3
  v_lshlrev_b32 v72, 10, v2
  v_add_u32 v73, {64 * 1024}, v72
  v_add_u32 v74, {128 * 1024}, v72
  v_add_u32 v75, {192 * 1024}, v72
  s_waitcnt lgkmcnt(0)""")
    if STAMP: a("  v_mov_b32 v95, 0")
    st(0); clk(14, 95, 100)
    a.srd(88, 52, NS * 1024, add=T_OFF)
    for j in range(4): a(f"  buffer_load_dword v{vCnt(j)}, v{72 + j}, s[88:91], s97 offen{RLD}")
    a.srd(4, 52, NS * CH * 4, add=A_OFF); a.srd(8, 52, NS * CH * 2 + 16, add=C_OFF); a.srd(12, 54, E * 8); a.srd(16, 58, E * 8); a.srd(92, 56, E * 2)
    a(f"""  s_mul_i32 s97, s2, {BE}
  v_add_u32 v73, s97, v0
  v_lshlrev_b32 v74, 1, v73
  v_lshlrev_b32 v75, 3, v73
  s_cmp_ge_u32 s96, {NW}
  s_cbranch_scc1 L_acc_nofin0
  buffer_load_ushort v{vDist}, v74, s[92:95], 0 offen
  buffer_load_dwordx2 v[{vMR}:{vMR+1}], v75, s[12:15], 0 offen
  s_load_dwordx16 s[72:87], s[66:67], 0
  s_load_dwordx8 s[20:27], s[68:69], 0
  s_load_dwordx8 s[36:43], s[70:71], 0
  s_load_dwordx4 s[68:71], s[60:61], 0
  s_load_dwordx16 s[52:67], s[64:65], 0
L_acc_nofin0:
  v_lshlrev_b32 v68, 24, v4
  v_lshl_or_b32 v68, v4, 16, v68
  v_add_u32 v68, 0x01000c0c, v68
  v_mov_b32 v69, {hex(OOB)}
  v_mul_u32_u24 v2, {CH * 4}, v2
  s_mov_b32 s98, 0
  s_barrier
  s_cmp_ge_u32 s96, {NW}
  s_cbranch_scc1 L_acc_w0
  s_waitcnt vmcnt(2)
  s_branch L_acc_w1
L_acc_w0:
  s_waitcnt vmcnt(0)
L_acc_w1:""")
    st(1)
    for j in range(4):
        a(f"""  v_and_b32 v70, 0xffff, v{vCnt(j)}
  v_lshrrev_b32 v{vCnt(j)}, 16, v{vCnt(j)}
  v_lshl_add_u32 v{vAdr(j)}, v70, 2, v2""")
        if j: a(f"  v_add_u32 v{vAdr(j)}, {j * 64 * CH * 4}, v{vAdr(j)}")
    a("L_acc_round:")
    for j in range(4):
        a(f"""  v_min_u32 v70, 64, v{vCnt(j)}
  v_sub_u32 v{vRem(j)}, v70, v3
  v_lshl_add_u32 v{72 + j}, v3, 2, v{vAdr(j)}
  v_cmp_lt_i32 s[{88 + 2*j}:{89 + 2*j}], 0, v{vRem(j)}""")
    a("  s_nop 0")
    for j in range(4):
        a(f"  v_cndmask_b32 v{72 + j}, v69, v{72 + j}, s[{88 + 2*j}:{89 + 2*j}]")
    for j in range(4):
        a(f"  v_lshrrev_b32 v{76 + j}, 1, v{72 + j}")
    for j in range(4):
        a(f"  buffer_load_dwordx4 v[{vA(j,0)}:{vA(j,3)}], v{72 + j}, s[4:7], 0 offen{RLD}")
        a(f"  buffer_load_dwordx2 v[{vC(j)}:{vC(j)+1}], v{76 + j}, s[8:11], 0 offen{RLD}")
    if PRIO: a("  s_setprio 0")
    st(2)

    def G(i, m):
        j, k = i // 4, i % 4
        a(f"  v_and_b32 v70, 0x1fffff, v{vA(j,k)}\n  v_lshrrev_b32 v{vA(j,k)}, 16, v{vA(j,k)}")
        if NOGATHER: a("  v_or_b32 v70, 0x200000, v70")
        a(f"  buffer_load_dwordx2 v[{m}:{m+1}], v70, s[12:15], 0 offen")
        a(f"  v_and_b32 v{vA(j,k)}, 0xffe0, v{vA(j,k)}")
    def A(i, m):
        j, k = i // 4, i % 4
        if NOA:
            a(f"  v_add_u32 v88, v{m}, v88"); return
        c = vC(j) + k // 2
        a(f"  v_lshlrev_b32 v71, 16, v{c}" if k % 2 == 0 else f"  v_and_b32 v71, 0xffff0000, v{c}")
        for t in range(4): a(f"  v_mov_b32_dpp v{72 + t}, v{m} {q(t)}")
        for t in range(4): a(f"  v_mov_b32_dpp v{88 + t}, v{m+1} {q(t)}")
        for t in range(4): a(f"  v_perm_b32 v{88 + t}, v{88 + t}, v{72 + t}, v68")
        for t in range(4): a(f"  v_add_u32_dpp v{84 + t}, v{vA(j,k)}, v5 {q(t)}")
        for t in range(4): a(f"  v_mul_f32_dpp v{88 + t}, v71, v{88 + t} {q(t)}")
        for t in range(4): a(f"  v_cvt_f64_f32 v[{76 + 2*t}:{77 + 2*t}], v{88 + t}")
        for t in range(4): a(f"  ds_add_f64 v{84 + t}, v[{76 + 2*t}:{77 + 2*t}]")
    def MASK(j):
        for k in range(4): a(f"  v_cmp_lt_i32 s[{88 + 2*k}:{89 + 2*k}], {k}, v{vRem(j)}")
        for k in range(4): a(f"  v_cndmask_b32 v{vA(j,k)}, -1, v{vA(j,k)}, s[{88 + 2*k}:{89 + 2*k}]")

    a(f"""  v_max_u32 v70, v{vCnt(0)}, v{vCnt(1)}
  v_max3_u32 v70, v70, v{vCnt(2)}, v{vCnt(3)}
  v_cmp_lt_u32 vcc, 64, v70
  s_nop 1
  s_cmp_eq_u64 vcc, 0
  s_cbranch_scc1 L_acc_nospare
  v_mov_b32 v56, 0
  v_mov_b32 v57, 0
  v_mov_b32 v58, -1""")
    for j in (3, 2, 1, 0):
        a(f"""  v_cmp_lt_u32 vcc, 64, v{vCnt(j)}
  v_subrev_u32 v70, 64, v{vCnt(j)}
  v_add_u32 v71, 256, v{vAdr(j)}
  v_cndmask_b32 v56, v56, v70, vcc
  v_cndmask_b32 v57, v57, v71, vcc
  v_cndmask_b32 v58, v58, {j}, vcc""")
    a(f"""  v_min_u32 v56, 64, v56
  v_sub_u32 v59, v56, v3
  v_lshl_add_u32 v57, v3, 2, v57
  v_cmp_lt_i32 vcc, 0, v59
  s_nop 1
  v_cndmask_b32 v57, v69, v57, vcc
  v_lshrrev_b32 v70, 1, v57
  buffer_load_dwordx4 v[60:63], v57, s[4:7], 0 offen{RLD}
  buffer_load_dwordx2 v[64:65], v70, s[8:11], 0 offen{RLD}""")
    for j in range(4):
        a(f"""  v_cmp_eq_u32 vcc, {j}, v58
  v_lshlrev_b32 v70, 2, v56
  s_nop 0
  v_cndmask_b32 v71, 0, v70, vcc
  v_cndmask_b32 v70, 0, v56, vcc
  v_add_u32 v{vAdr(j)}, v{vAdr(j)}, v71
  v_sub_u32 v{vCnt(j)}, v{vCnt(j)}, v70""")
    a("  s_waitcnt vmcnt(0)")
    for k in range(4): a(f"  v_cmp_lt_i32 s[{88 + 2*k}:{89 + 2*k}], {k}, v59")
    for k in range(4): a(f"  v_cndmask_b32 v{60 + k}, -1, v{60 + k}, s[{88 + 2*k}:{89 + 2*k}]")
    for k in range(4):
        a(f"""  v_and_b32 v70, 0x1fffff, v{60 + k}
  v_lshrrev_b32 v{60 + k}, 16, v{60 + k}
  buffer_load_dwordx2 v[{96 + 2*k}:{97 + 2*k}], v70, s[12:15], 0 offen
  v_and_b32 v{60 + k}, 0xffe0, v{60 + k}""")
    a("  s_waitcnt vmcnt(0)")
    for k in range(4):
        m = 96 + 2 * k; c = 64 + k // 2
        a(f"  v_lshlrev_b32 v71, 16, v{c}" if k % 2 == 0 else f"  v_and_b32 v71, 0xffff0000, v{c}")
        for t in range(4): a(f"  v_mov_b32_dpp v{72 + t}, v{m} {q(t)}")
        for t in range(4): a(f"  v_mov_b32_dpp v{88 + t}, v{m+1} {q(t)}")
        for t in range(4): a(f"  v_perm_b32 v{88 + t}, v{88 + t}, v{72 + t}, v68")
        for t in range(4): a(f"  v_add_u32_dpp v{84 + t}, v{60 + k}, v5 {q(t)}")
        for t in range(4): a(f"  v_mul_f32_dpp v{88 + t}, v71, v{88 + t} {q(t)}")
        for t in range(4): a(f"  v_cvt_f64_f32 v[{76 + 2*t}:{77 + 2*t}], v{88 + t}")
        for t in range(4): a(f"  ds_add_f64 v{84 + t}, v[{76 + 2*t}:{77 + 2*t}]")
    a("L_acc_nospare:")

    a(f"""  s_cmp_lg_u32 s98, 0
  s_cbranch_scc1 L_acc_nogh
  s_mov_b32 s98, 1
  s_cmp_ge_u32 s96, {NW}
  s_cbranch_scc1 L_acc_nogh
  s_waitcnt lgkmcnt(0)""")
    for base in (72, 52):
        for kp in range(4):
            for jp in range(2):
                x = base + (2 * kp) * 2 + jp; y = base + (2 * kp + 1) * 2 + jp
                a(f"  s_pack_ll_b32_b16 s97, s{x}, s{y}\n  s_pack_hh_b32_b16 s{y}, s{x}, s{y}\n  s_mov_b32 s{x}, s97")
    for i in range(7, -1, -1):
        a(f"  s_and_b32 s{WD + 2*i + 1}, s{20 + i}, 0xffff0000\n  s_lshl_b32 s{WD + 2*i}, s{20 + i}, 16")
        a(f"  s_and_b32 s{WU + 2*i + 1}, s{36 + i}, 0xffff0000\n  s_lshl_b32 s{WU + 2*i}, s{36 + i}, 16")
    a(f"  s_waitcnt vmcnt(8) lgkmcnt(0)\n  v_lshlrev_b32 v{vDist}, 16, v{vDist}")
    NEG10 = f32hex(-10.0); LOG2E = f32hex(math.log2(math.e))
    for kp in range(4):
        c = 68 + kp
        a(f"""  s_lshl_b32 s97, s{c}, 16
  s_and_b32 s99, s{c}, 0xffff0000
  v_subrev_f32 v70, s97, v{vDist}
  v_subrev_f32 v71, s99, v{vDist}
  v_cvt_pk_bf16_f32 v72, v70, v71
  v_lshlrev_b32 v70, 16, v72
  v_and_b32 v71, 0xffff0000, v72
  v_mul_f32 v70, v70, v70
  v_mul_f32 v71, v71, v71
  v_cvt_pk_bf16_f32 v72, v70, v71
  v_lshlrev_b32 v70, 16, v72
  v_and_b32 v71, 0xffff0000, v72
  v_mul_f32 v70, {NEG10}, v70
  v_mul_f32 v71, {NEG10}, v71
  v_cvt_pk_bf16_f32 v72, v70, v71
  v_lshlrev_b32 v70, 16, v72
  v_and_b32 v71, 0xffff0000, v72
  v_mul_f32 v70, {LOG2E}, v70
  v_mul_f32 v71, {LOG2E}, v71
  v_exp_f32 v70, v70
  v_exp_f32 v71, v71
  s_nop 0
  v_cvt_pk_bf16_f32 v{80 + kp}, v70, v71""")
    for (base, dst) in ((72, vG_), (52, vH_)):
        for j in range(4):
            jp, hi = j // 2, j % 2
            for kp in range(4):
                s = base + (2 * kp + hi) * 2 + jp
                a(f"  v_dot2_f32_bf16 v{dst + j}, v{80 + kp}, s{s}, {'0' if kp == 0 else 'v%d' % (dst + j)}")
    a(f"""  s_nop 2
  v_cvt_pk_bf16_f32 v70, v{vH_}, v{vH_+1}
  v_cvt_pk_bf16_f32 v71, v{vH_+2}, v{vH_+3}
  v_lshlrev_b32 v{vH_}, 16, v70
  v_and_b32 v{vH_+1}, 0xffff0000, v70
  v_lshlrev_b32 v{vH_+2}, 16, v71
  v_and_b32 v{vH_+3}, 0xffff0000, v71
L_acc_nogh:""")
    st(3)
    log = []
    for j in range(4): log += [('RA', j), ('RC', j)]
    def wait_for(*tags):
        last = max(k for k, e in enumerate(log) if e in tags)
        a(f"  s_waitcnt vmcnt({len(log) - 1 - last})")
    NSLOT = 16
    masked = set()
    def issueG(i):
        j = i // 4
        if j not in masked:
            wait_for(('RA', j)); MASK(j); masked.add(j)
        G(i, vM(i)); log.append(('G', i))
    for k in range(D):
        issueG(k)
        if k == 0: st(4)
    for i in range(NSLOT):
        if i + D < NSLOT: issueG(i + D)
        wait_for(('G', i), ('RC', i // 4))
        if i in (0, 4, 8, 12): st(5 + i // 4)
        A(i, vM(i))
    st(9)
    for j in range(4):
        a(f"  v_min_u32 v70, 64, v{vCnt(j)}\n  v_sub_u32 v{vCnt(j)}, v{vCnt(j)}, v70\n  v_add_u32 v{vAdr(j)}, 256, v{vAdr(j)}")
    a(f"""  v_or_b32 v70, v{vCnt(0)}, v{vCnt(1)}
  v_or3_b32 v70, v70, v{vCnt(2)}, v{vCnt(3)}
  v_cmp_lt_u32 vcc, 0, v70
  s_nop 1
  s_cmp_lg_u64 vcc, 0
  s_cbranch_scc1 L_acc_round
  s_waitcnt lgkmcnt(0)
  s_barrier""")
    st(10)
    a(f"""  s_cmp_ge_u32 s96, {NW}
  s_cbranch_scc1 L_acc_fin_skip
  v_lshlrev_b32 v70, 5, v0
  ds_read_b128 v[20:23], v70
  ds_read_b128 v[24:27], v70 offset:16
  s_mul_i32 s97, s2, {BE * 8}
  v_lshlrev_b32 v70, 3, v0
  v_lshlrev_b32 v40, 16, v{vMR}
  v_and_b32 v41, 0xffff0000, v{vMR}
  v_lshlrev_b32 v42, 16, v{vMR+1}
  v_and_b32 v43, 0xffff0000, v{vMR+1}
  s_waitcnt lgkmcnt(0)""")
    for i in range(4): a(f"  v_cvt_f32_f64 v{28 + i}, v[{20 + 2*i}:{21 + 2*i}]")
    for j in range(4):
        a(f"  v_mul_f32 v{32 + j}, s{WD + j}, v28")
        for i in range(1, 4): a(f"  v_fmac_f32 v{32 + j}, s{WD + 4*i + j}, v{28 + i}")
    for j in range(4): a(f"  v_mul_f32 v{32 + j}, v{32 + j}, v{vG_ + j}")
    for j in range(4):
        a(f"  v_mul_f32 v{36 + j}, s{WU + j}, v32")
        for i in range(1, 4): a(f"  v_fmac_f32 v{36 + j}, s{WU + 4*i + j}, v{32 + i}")
    for j in range(4): a(f"  v_fmac_f32 v{40 + j}, v{36 + j}, v{vH_ + j}")
    r = {'S': 28, 'g': vG_, 'h': vH_}.get(DBG)
    if r is not None:
        for i in range(4): a(f"  v_mov_b32 v{40+i}, v{r+i}")
    a(f"""  v_cvt_pk_bf16_f32 v44, v40, v41
  v_cvt_pk_bf16_f32 v45, v42, v43
  buffer_store_dwordx2 v[44:45], v70, s[16:19], s97 offen{OST}
L_acc_fin_skip:""")
    if STAMP:
        a("  s_waitcnt vmcnt(0)")
        st(11); clk(15, 95, 100)
        a("  s_load_dwordx2 s[62:63], s[0:1], 104\n  s_waitcnt lgkmcnt(0)")
        a.srd(4, 62, S_OFF + 0x200000)
        stamp_out(1, 95, 100, 96, 4, 70)
    a("L_acc_end:\n  s_endpgm")
    return 96 + max(RING * 2, 8)

k1(); nv = k2()
a.descs([("part_kernel", 72, 64), ("acc_kernel", nv, 102)])
open(sys.argv[1], "w").write(a.text())
```

```python
import sys, os
from common import *

env = lambda k, d: type(d)(os.environ.get(k, d))
NS = 250; CH = 10240; BE = 640; P = 250; NW = BE // 64
A_OFF = 0; C_OFF = 0x1000000; T_OFF = 0x2000000; S_OFF = 0x3000000
MAGIC = (2**32 + BE - 1) // BE
assert all(((i * MAGIC) >> 32) == i // BE for i in range(E))
K1_LDS = 2048 + CH * 6
K2_LDS = BE * 32
LDNT = env('LDNT', ' nt'); STF = env('STF', ' sc0 sc1'); RLD = env('RLD', ''); OST = env('OST', '')
STAMP = env('STAMP', 0); DBG = env('DBG', '')
D = env('D', 3); PRIO = env('PRIO', 1); NOA = env('NOA', 0); NOGATHER = env('NOGATHER', 0)
OOB = 0x7fffff00
WARM = env('WARM', 0); GH_AT = env('GH_AT', -1); MPRE = env('MPRE', 0)

a = Asm()
a.header([("part_kernel", NS, 1024, K1_LDS), ("acc_kernel", 256, 1024, K2_LDS)])

def stamp(i, vreg, sp):
    if STAMP: a(f"  s_memrealtime s[{sp}:{sp+1}]\n  s_waitcnt lgkmcnt(0)\n  v_writelane_b32 v{vreg}, s{sp}, {i}")
def clk(i, vreg, sp):
    if STAMP: a(f"  s_memtime s[{sp}:{sp+1}]\n  s_waitcnt lgkmcnt(0)\n  v_writelane_b32 v{vreg}, s{sp}, {i}")
def stamp_out(kidx, vreg, sp, wavereg, srd, tmp):
    if STAMP: a(f"""  s_lshl_b32 s{sp}, s2, 4
  s_add_u32 s{sp}, s{sp}, s{wavereg}
  s_lshl_b32 s{sp}, s{sp}, 6
  s_add_u32 s{sp}, s{sp}, {hex(S_OFF + kidx * 0x100000)}
  v_and_b32 v{tmp}, 63, v0
  v_cmp_gt_u32 vcc, 16, v{tmp}
  v_lshlrev_b32 v{tmp}, 2, v{tmp}
  s_mov_b64 exec, vcc
  buffer_store_dword v{vreg}, v{tmp}, s[{srd}:{srd+3}], s{sp} offen
  s_mov_b64 exec, -1""")

def k1():
    a.kernel("part_kernel")
    vO = [8 + k for k in range(10)]; vI = [20 + k for k in range(10)]; vG = [30, 31, 32, 33, 34]
    vL = [36 + k for k in range(10)]; vR = [46 + k for k in range(10)]; vP = [56 + k for k in range(10)]
    st = lambda i: stamp(i, 70, 50)
    a(f"""  s_cmp_ge_u32 s2, {NS}
  s_cbranch_scc1 L_part_end
  s_load_dwordx4 s[4:7], s[0:1], 8
  s_load_dwordx2 s[8:9], s[0:1], 32
  s_load_dwordx2 s[10:11], s[0:1], 48
  s_load_dwordx2 s[12:13], s[0:1], 104
  v_lshlrev_b32 v1, 4, v0
  v_lshlrev_b32 v2, 3, v0
  v_lshlrev_b32 v3, 2, v0
  v_mov_b32 v4, 0
  v_mov_b32 v5, 1
  ds_write_b32 v3, v4
  v_readfirstlane_b32 s38, v0
  s_mul_i32 s32, s2, {CH*4}
  s_add_u32 s33, s32, 16384
  s_add_u32 s34, s32, 32768
  s_mul_i32 s35, s2, {CH*2}
  s_add_u32 s36, s35, 8192
  s_add_u32 s37, s35, 16384
  s_lshr_b32 s38, s38, 6
  s_movk_i32 s40, {-BE}
  s_waitcnt lgkmcnt(0)""")
    if STAMP: a("  v_mov_b32 v70, 0")
    st(0)
    a.srd(16, 6, T * 4); a.srd(20, 4, T * 4); a.srd(24, 8, T * 2)
    a(f"""  s_load_dword s39, s[10:11], 0
  buffer_load_dwordx4 v[8:11], v1, s[16:19], s32 offen{LDNT}
  buffer_load_dwordx4 v[12:15], v1, s[16:19], s33 offen{LDNT}
  buffer_load_dwordx2 v[16:17], v2, s[16:19], s34 offen{LDNT}
  buffer_load_dwordx4 v[20:23], v1, s[20:23], s32 offen{LDNT}
  buffer_load_dwordx4 v[24:27], v1, s[20:23], s33 offen{LDNT}
  buffer_load_dwordx2 v[28:29], v2, s[20:23], s34 offen{LDNT}
  buffer_load_dwordx2 v[30:31], v2, s[24:27], s35 offen{LDNT}
  buffer_load_dwordx2 v[32:33], v2, s[24:27], s36 offen{LDNT}
  buffer_load_dword v34, v3, s[24:27], s37 offen{LDNT}""")
    a.srd(28, 12, (S_OFF + 0x200000) if STAMP else (T_OFF + NS * 1024))
    if WARM:
        a(f"""  s_cmp_lg_u32 s38, {WARM - 1}
  s_cbranch_scc1 L_part_nowarm
  s_load_dwordx2 s[48:49], s[0:1], 0
  s_load_dwordx2 s[50:51], s[0:1], 24
  s_waitcnt lgkmcnt(0)""")
        a.srd(52, 48, E * 8); a.srd(56, 50, E * 2)
        a(f"""  s_mul_i32 s48, s2, {BE * 8}
  s_mul_i32 s49, s2, {BE * 2}
  v_and_b32 v6, 63, v0
  v_lshlrev_b32 v6, 7, v6
  v_cmp_gt_u32 vcc, {BE * 8}, v6
  s_nop 0
  v_mov_b32 v68, {hex(OOB)}
  v_cndmask_b32 v69, v68, v6, vcc
  buffer_load_dword v69, v69, s[52:55], s48 offen
  v_cmp_gt_u32 vcc, {BE * 2}, v6
  s_nop 1
  v_cndmask_b32 v68, v68, v6, vcc
  buffer_load_dword v68, v68, s[56:59], s49 offen
L_part_nowarm:""")
    a("  s_barrier")
    for g, (lo, hi) in enumerate([(0, 4), (4, 8), (8, 10)]):
        a(f"  s_waitcnt vmcnt({8-g})")
        st(1 + g)
        for k in range(lo, hi):
            a(f"""  v_mul_hi_u32_u24 v6, {hex(MAGIC)}, v{vO[k]}
  v_mad_i32_i24 v{vL[k]}, v6, s40, v{vO[k]}
  v_lshlrev_b32 v{vO[k]}, 2, v6
  ds_add_rtn_u32 v{vR[k]}, v{vO[k]}, v5""")
    st(4)
    a(f"""  s_waitcnt lgkmcnt(0)
  s_barrier
  s_cmp_lg_u32 s38, 0
  s_cbranch_scc1 L_part_noscan
  ds_read_b128 v[56:59], v1
  s_waitcnt lgkmcnt(0)
  v_add_u32 v60, v56, v57
  v_add_u32 v61, v60, v58
  v_add_u32 v62, v61, v59
  v_mov_b32 v63, v62""")
    for sh in (1, 2, 4, 8):
        a(f"  s_nop 1\n  v_add_u32_dpp v63, v63, v63 row_shr:{sh} row_mask:0xf bank_mask:0xf bound_ctrl:0")
    a(f"""  s_nop 1
  v_add_u32_dpp v63, v63, v63 row_bcast:15 row_mask:0xa bank_mask:0xf
  s_nop 1
  v_add_u32_dpp v63, v63, v63 row_bcast:31 row_mask:0xc bank_mask:0xf
  v_sub_u32 v64, v63, v62
  v_add_u32 v65, v64, v56
  v_add_u32 v66, v64, v60
  v_add_u32 v67, v64, v61
  ds_write_b128 v1, v[64:67] offset:1024
  v_lshl_or_b32 v56, v56, 16, v64
  v_lshl_or_b32 v57, v57, 16, v65
  v_lshl_or_b32 v58, v58, 16, v66
  v_lshl_or_b32 v59, v59, 16, v67
  s_lshl_b32 s41, s2, 10
  s_add_u32 s41, s41, {hex(T_OFF)}
  buffer_store_dwordx4 v[56:59], v1, s[28:31], s41 offen{STF}
  s_waitcnt lgkmcnt(0)
L_part_noscan:
  s_barrier""")
    st(5)
    for k in range(10): a(f"  ds_read_b32 v{vP[k]}, v{vO[k]} offset:1024")
    a(f"""  s_lshl_b32 s39, s39, 16
  v_mov_b32 v7, s39
  v_mul_f32 v7, 0.15915494, v7""")
    for g, (lo, hi) in enumerate([(0, 4), (4, 8), (8, 10)]):
        a(f"  s_waitcnt vmcnt({5-g})")
        for k in range(lo, hi):
            a(f"  v_lshlrev_b32 v{vI[k]}, 3, v{vI[k]}\n  v_lshl_or_b32 v{vI[k]}, v{vL[k]}, 21, v{vI[k]}")
    st(6)
    a("  s_waitcnt lgkmcnt(0)")
    for k in range(10):
        a(f"""  v_add_u32 v{vP[k]}, v{vP[k]}, v{vR[k]}
  v_lshlrev_b32 v{vR[k]}, 2, v{vP[k]}
  v_lshlrev_b32 v{vP[k]}, 1, v{vP[k]}
  ds_write_b32 v{vR[k]}, v{vI[k]} offset:2048""")
    waits = {0: 2, 2: 1, 4: 0}
    for p in range(5):
        if p in waits: a(f"  s_waitcnt vmcnt({waits[p]})")
        g = vG[p]
        a(f"""  v_lshlrev_b32 v6, 16, v{g}
  v_and_b32 v66, 0xffff0000, v{g}
  v_mul_f32 v6, v7, v6
  v_mul_f32 v66, v7, v66
  v_fract_f32 v6, v6
  v_fract_f32 v66, v66
  v_cos_f32 v6, v6
  v_cos_f32 v66, v66
  s_nop 0
  v_cvt_pk_bf16_f32 v{g}, v6, v66
  ds_write_b16 v{vP[2*p]}, v{g} offset:{2048 + CH*4}
  ds_write_b16_d16_hi v{vP[2*p+1]}, v{g} offset:{2048 + CH*4}""")
    st(7)
    a(f"""  s_mul_i32 s42, s2, {CH*4}
  s_add_u32 s43, s42, 16384
  s_add_u32 s44, s42, 32768
  s_mul_i32 s45, s2, {CH*2}
  s_add_u32 s45, s45, {hex(C_OFF)}
  s_sub_u32 s46, s45, 8192
  s_add_u32 s47, s45, 8192
  s_cmp_lt_u32 s38, 8
  s_cselect_b32 s44, s44, s46
  s_waitcnt lgkmcnt(0)
  s_barrier""")
    st(8)
    a(f"""  ds_read_b128 v[8:11], v1 offset:2048
  ds_read_b128 v[12:15], v1 offset:{2048+16384}
  ds_read_b128 v[16:19], v1 offset:{2048+32768}
  s_cmp_ge_u32 s38, 12
  s_cbranch_scc1 L_part_three
  ds_read_b128 v[20:23], v1 offset:{2048+49152}
  s_waitcnt lgkmcnt(0)
  buffer_store_dwordx4 v[20:23], v1, s[28:31], s47 offen{STF}
L_part_three:
  s_waitcnt lgkmcnt(0)
  buffer_store_dwordx4 v[8:11], v1, s[28:31], s42 offen{STF}
  buffer_store_dwordx4 v[12:15], v1, s[28:31], s43 offen{STF}
  buffer_store_dwordx4 v[16:19], v1, s[28:31], s44 offen{STF}""")
    st(9)
    if STAMP: a("  s_waitcnt vmcnt(0)")
    st(10)
    stamp_out(0, 70, 50, 38, 28, 6)
    a("L_part_end:\n  s_endpgm")

def k2():
    RING = D + 2
    a.kernel("acc_kernel")
    vA = lambda j, k: 20 + 4 * j + k
    vC = lambda j: 36 + 2 * j
    vCnt = lambda j: 44 + j
    vAdr = lambda j: 48 + j
    vRem = lambda j: 52 + j
    vM = lambda i: 96 + (i % RING) * 2
    vG_, vH_, vMR, vDist = 12, 16, 10, 9
    WD, WU = 20, 36
    st = lambda i: stamp(i, 95, 100)
    q = lambda j: f"quad_perm:[{j},{j},{j},{j}] row_mask:0xf bank_mask:0xf"
    a(f"""  s_cmp_ge_u32 s2, 256
  s_cbranch_scc1 L_acc_end
  s_mov_b32 s63, s2
  s_and_b32 s3, s2, 7
  s_lshr_b32 s2, s2, 3
  s_mul_i32 s3, s3, 32
  s_add_u32 s2, s2, s3
  s_mul_i32 s3, s2, 250
  s_lshr_b32 s4, s3, 8
  s_add_u32 s3, s3, 250
  s_lshr_b32 s3, s3, 8
  s_cmp_eq_u32 s3, s4
  s_cbranch_scc1 L_acc_end
  s_mov_b32 s2, s4
  s_load_dwordx2 s[52:53], s[0:1], 104
  s_load_dwordx2 s[54:55], s[0:1], 0
  s_load_dwordx2 s[56:57], s[0:1], 24
  s_load_dwordx2 s[58:59], s[0:1], 88
  s_load_dwordx2 s[60:61], s[0:1], 40
  s_load_dwordx4 s[64:67], s[0:1], 56
  s_load_dwordx4 s[68:71], s[0:1], 72""")
    if PRIO: a("  s_setprio 3")
    a(f"""  v_and_b32 v1, 63, v0
  v_readfirstlane_b32 s96, v0
  v_and_b32 v4, 3, v0
  v_lshlrev_b32 v5, 3, v4
  v_lshlrev_b32 v4, 1, v4
  v_lshlrev_b32 v70, 4, v0
  v_mov_b32 v76, 0
  v_mov_b32 v77, 0
  v_mov_b32 v78, 0
  v_mov_b32 v79, 0
  ds_write_b128 v70, v[76:79]
  ds_write_b128 v70, v[76:79] offset:16384
  s_lshr_b32 s96, s96, 6
  s_lshl_b32 s97, s2, 2
  v_lshrrev_b32 v2, 4, v1
  v_lshlrev_b32 v2, 4, v2
  v_add_u32 v2, s96, v2
  v_and_b32 v3, 15, v1
  v_lshlrev_b32 v3, 2, v3
  v_lshlrev_b32 v72, 10, v2
  v_add_u32 v73, {64 * 1024}, v72
  v_add_u32 v74, {128 * 1024}, v72
  v_add_u32 v75, {192 * 1024}, v72
  s_waitcnt lgkmcnt(0)""")
    if STAMP: a("  v_mov_b32 v95, 0")
    st(0); clk(14, 95, 100)
    if MPRE:
        a.srd(12, 54, E * 8)
        a(f"""  s_cmp_ge_u32 s96, 5
  s_cbranch_scc1 L_acc_nopre
  s_lshr_b32 s99, s63, 3
  s_mul_i32 s99, s99, {313 * 128}
  v_lshlrev_b32 v69, 7, v0
  v_cmp_gt_u32 vcc, 313, v0
  s_mov_b64 exec, vcc
  buffer_load_dword v67, v69, s[12:15], s99 offen
  s_mov_b64 exec, -1
L_acc_nopre:""")
    a.srd(88, 52, NS * 1024, add=T_OFF)
    for j in range(4): a(f"  buffer_load_dword v{vCnt(j)}, v{72 + j}, s[88:91], s97 offen{RLD}")
    a.srd(4, 52, NS * CH * 4, add=A_OFF); a.srd(8, 52, NS * CH * 2 + 16, add=C_OFF); a.srd(12, 54, E * 8); a.srd(16, 58, E * 8); a.srd(92, 56, E * 2)
    a(f"""  s_mul_i32 s97, s2, {BE}
  v_add_u32 v73, s97, v0
  v_lshlrev_b32 v74, 1, v73
  v_lshlrev_b32 v75, 3, v73
  s_cmp_ge_u32 s96, {NW}
  s_cbranch_scc1 L_acc_nofin0
  buffer_load_ushort v{vDist}, v74, s[92:95], 0 offen
  buffer_load_dwordx2 v[{vMR}:{vMR+1}], v75, s[12:15], 0 offen
  s_load_dwordx16 s[72:87], s[66:67], 0
  s_load_dwordx8 s[20:27], s[68:69], 0
  s_load_dwordx8 s[36:43], s[70:71], 0
  s_load_dwordx4 s[68:71], s[60:61], 0
  s_load_dwordx16 s[52:67], s[64:65], 0
L_acc_nofin0:
  v_lshlrev_b32 v68, 24, v4
  v_lshl_or_b32 v68, v4, 16, v68
  v_add_u32 v68, 0x01000c0c, v68
  v_mov_b32 v69, {hex(OOB)}
  v_mul_u32_u24 v2, {CH * 4}, v2
  s_mov_b32 s98, 0
  s_barrier
  s_cmp_ge_u32 s96, {NW}
  s_cbranch_scc1 L_acc_w0
  s_waitcnt vmcnt(2)
  s_branch L_acc_w1
L_acc_w0:
  s_waitcnt vmcnt(0)
L_acc_w1:""")
    st(1)
    for j in range(4):
        a(f"""  v_and_b32 v70, 0xffff, v{vCnt(j)}
  v_lshrrev_b32 v{vCnt(j)}, 16, v{vCnt(j)}
  v_lshl_add_u32 v{vAdr(j)}, v70, 2, v2""")
        if j: a(f"  v_add_u32 v{vAdr(j)}, {j * 64 * CH * 4}, v{vAdr(j)}")
    a("L_acc_round:")
    for j in range(4):
        a(f"""  v_min_u32 v70, 64, v{vCnt(j)}
  v_sub_u32 v{vRem(j)}, v70, v3
  v_lshl_add_u32 v{72 + j}, v3, 2, v{vAdr(j)}
  v_cmp_lt_i32 s[{88 + 2*j}:{89 + 2*j}], 0, v{vRem(j)}""")
    a("  s_nop 0")
    for j in range(4):
        a(f"  v_cndmask_b32 v{72 + j}, v69, v{72 + j}, s[{88 + 2*j}:{89 + 2*j}]")
    for j in range(4):
        a(f"  v_lshrrev_b32 v{76 + j}, 1, v{72 + j}")
    for j in range(4):
        a(f"  buffer_load_dwordx4 v[{vA(j,0)}:{vA(j,3)}], v{72 + j}, s[4:7], 0 offen{RLD}")
        a(f"  buffer_load_dwordx2 v[{vC(j)}:{vC(j)+1}], v{76 + j}, s[8:11], 0 offen{RLD}")
    if PRIO: a("  s_setprio 0")
    st(2)

    def G(i, m):
        j, k = i // 4, i % 4
        a(f"  v_and_b32 v70, 0x1fffff, v{vA(j,k)}\n  v_lshrrev_b32 v{vA(j,k)}, 16, v{vA(j,k)}")
        if NOGATHER: a("  v_or_b32 v70, 0x200000, v70")
        a(f"  buffer_load_dwordx2 v[{m}:{m+1}], v70, s[12:15], 0 offen")
        a(f"  v_and_b32 v{vA(j,k)}, 0xffe0, v{vA(j,k)}")
    def A(i, m):
        j, k = i // 4, i % 4
        if NOA:
            a(f"  v_add_u32 v88, v{m}, v88"); return
        c = vC(j) + k // 2
        a(f"  v_lshlrev_b32 v71, 16, v{c}" if k % 2 == 0 else f"  v_and_b32 v71, 0xffff0000, v{c}")
        for t in range(4): a(f"  v_mov_b32_dpp v{72 + t}, v{m} {q(t)}")
        for t in range(4): a(f"  v_mov_b32_dpp v{88 + t}, v{m+1} {q(t)}")
        for t in range(4): a(f"  v_perm_b32 v{88 + t}, v{88 + t}, v{72 + t}, v68")
        for t in range(4): a(f"  v_add_u32_dpp v{84 + t}, v{vA(j,k)}, v5 {q(t)}")
        for t in range(4): a(f"  v_mul_f32_dpp v{88 + t}, v71, v{88 + t} {q(t)}")
        for t in range(4): a(f"  v_cvt_f64_f32 v[{76 + 2*t}:{77 + 2*t}], v{88 + t}")
        for t in range(4): a(f"  ds_add_f64 v{84 + t}, v[{76 + 2*t}:{77 + 2*t}]")
    def MASK(j):
        for k in range(4): a(f"  v_cmp_lt_i32 s[{88 + 2*k}:{89 + 2*k}], {k}, v{vRem(j)}")
        for k in range(4): a(f"  v_cndmask_b32 v{vA(j,k)}, -1, v{vA(j,k)}, s[{88 + 2*k}:{89 + 2*k}]")

    a(f"""  v_max_u32 v70, v{vCnt(0)}, v{vCnt(1)}
  v_max3_u32 v70, v70, v{vCnt(2)}, v{vCnt(3)}
  v_cmp_lt_u32 vcc, 64, v70
  s_nop 1
  s_cmp_eq_u64 vcc, 0
  s_cbranch_scc1 L_acc_nospare
  v_mov_b32 v56, 0
  v_mov_b32 v57, 0
  v_mov_b32 v58, -1""")
    for j in (3, 2, 1, 0):
        a(f"""  v_cmp_lt_u32 vcc, 64, v{vCnt(j)}
  v_subrev_u32 v70, 64, v{vCnt(j)}
  v_add_u32 v71, 256, v{vAdr(j)}
  v_cndmask_b32 v56, v56, v70, vcc
  v_cndmask_b32 v57, v57, v71, vcc
  v_cndmask_b32 v58, v58, {j}, vcc""")
    a(f"""  v_min_u32 v56, 64, v56
  v_sub_u32 v59, v56, v3
  v_lshl_add_u32 v57, v3, 2, v57
  v_cmp_lt_i32 vcc, 0, v59
  s_nop 1
  v_cndmask_b32 v57, v69, v57, vcc
  v_lshrrev_b32 v70, 1, v57
  buffer_load_dwordx4 v[60:63], v57, s[4:7], 0 offen{RLD}
  buffer_load_dwordx2 v[64:65], v70, s[8:11], 0 offen{RLD}""")
    for j in range(4):
        a(f"""  v_cmp_eq_u32 vcc, {j}, v58
  v_lshlrev_b32 v70, 2, v56
  s_nop 0
  v_cndmask_b32 v71, 0, v70, vcc
  v_cndmask_b32 v70, 0, v56, vcc
  v_add_u32 v{vAdr(j)}, v{vAdr(j)}, v71
  v_sub_u32 v{vCnt(j)}, v{vCnt(j)}, v70""")
    a("  s_waitcnt vmcnt(0)")
    for k in range(4): a(f"  v_cmp_lt_i32 s[{88 + 2*k}:{89 + 2*k}], {k}, v59")
    for k in range(4): a(f"  v_cndmask_b32 v{60 + k}, -1, v{60 + k}, s[{88 + 2*k}:{89 + 2*k}]")
    for k in range(4):
        a(f"""  v_and_b32 v70, 0x1fffff, v{60 + k}
  v_lshrrev_b32 v{60 + k}, 16, v{60 + k}
  buffer_load_dwordx2 v[{96 + 2*k}:{97 + 2*k}], v70, s[12:15], 0 offen
  v_and_b32 v{60 + k}, 0xffe0, v{60 + k}""")
    a("  s_waitcnt vmcnt(0)")
    for k in range(4):
        m = 96 + 2 * k; c = 64 + k // 2
        a(f"  v_lshlrev_b32 v71, 16, v{c}" if k % 2 == 0 else f"  v_and_b32 v71, 0xffff0000, v{c}")
        for t in range(4): a(f"  v_mov_b32_dpp v{72 + t}, v{m} {q(t)}")
        for t in range(4): a(f"  v_mov_b32_dpp v{88 + t}, v{m+1} {q(t)}")
        for t in range(4): a(f"  v_perm_b32 v{88 + t}, v{88 + t}, v{72 + t}, v68")
        for t in range(4): a(f"  v_add_u32_dpp v{84 + t}, v{60 + k}, v5 {q(t)}")
        for t in range(4): a(f"  v_mul_f32_dpp v{88 + t}, v71, v{88 + t} {q(t)}")
        for t in range(4): a(f"  v_cvt_f64_f32 v[{76 + 2*t}:{77 + 2*t}], v{88 + t}")
        for t in range(4): a(f"  ds_add_f64 v{84 + t}, v[{76 + 2*t}:{77 + 2*t}]")
    a("L_acc_nospare:")

    def GH(GHW):
        a(f"""  s_cmp_lg_u32 s98, 0
      s_cbranch_scc1 L_acc_nogh
      s_mov_b32 s98, 1
      s_cmp_ge_u32 s96, {NW}
      s_cbranch_scc1 L_acc_nogh
      s_waitcnt lgkmcnt(0)""")
        for base in (72, 52):
            for kp in range(4):
                for jp in range(2):
                    x = base + (2 * kp) * 2 + jp; y = base + (2 * kp + 1) * 2 + jp
                    a(f"  s_pack_ll_b32_b16 s97, s{x}, s{y}\n  s_pack_hh_b32_b16 s{y}, s{x}, s{y}\n  s_mov_b32 s{x}, s97")
        for i in range(7, -1, -1):
            a(f"  s_and_b32 s{WD + 2*i + 1}, s{20 + i}, 0xffff0000\n  s_lshl_b32 s{WD + 2*i}, s{20 + i}, 16")
            a(f"  s_and_b32 s{WU + 2*i + 1}, s{36 + i}, 0xffff0000\n  s_lshl_b32 s{WU + 2*i}, s{36 + i}, 16")
        a(f"  s_waitcnt {GHW}lgkmcnt(0)\n  v_lshlrev_b32 v{vDist}, 16, v{vDist}")
        NEG10 = f32hex(-10.0); LOG2E = f32hex(math.log2(math.e))
        for kp in range(4):
            c = 68 + kp
            a(f"""  s_lshl_b32 s97, s{c}, 16
      s_and_b32 s99, s{c}, 0xffff0000
      v_subrev_f32 v70, s97, v{vDist}
      v_subrev_f32 v71, s99, v{vDist}
      v_cvt_pk_bf16_f32 v72, v70, v71
      v_lshlrev_b32 v70, 16, v72
      v_and_b32 v71, 0xffff0000, v72
      v_mul_f32 v70, v70, v70
      v_mul_f32 v71, v71, v71
      v_cvt_pk_bf16_f32 v72, v70, v71
      v_lshlrev_b32 v70, 16, v72
      v_and_b32 v71, 0xffff0000, v72
      v_mul_f32 v70, {NEG10}, v70
      v_mul_f32 v71, {NEG10}, v71
      v_cvt_pk_bf16_f32 v72, v70, v71
      v_lshlrev_b32 v70, 16, v72
      v_and_b32 v71, 0xffff0000, v72
      v_mul_f32 v70, {LOG2E}, v70
      v_mul_f32 v71, {LOG2E}, v71
      v_exp_f32 v70, v70
      v_exp_f32 v71, v71
      s_nop 0
      v_cvt_pk_bf16_f32 v{80 + kp}, v70, v71""")
        for (base, dst) in ((72, vG_), (52, vH_)):
            for j in range(4):
                jp, hi = j // 2, j % 2
                for kp in range(4):
                    s = base + (2 * kp + hi) * 2 + jp
                    a(f"  v_dot2_f32_bf16 v{dst + j}, v{80 + kp}, s{s}, {'0' if kp == 0 else 'v%d' % (dst + j)}")
        a(f"""  s_nop 2
      v_cvt_pk_bf16_f32 v70, v{vH_}, v{vH_+1}
      v_cvt_pk_bf16_f32 v71, v{vH_+2}, v{vH_+3}
      v_lshlrev_b32 v{vH_}, 16, v70
      v_and_b32 v{vH_+1}, 0xffff0000, v70
      v_lshlrev_b32 v{vH_+2}, 16, v71
      v_and_b32 v{vH_+3}, 0xffff0000, v71
    L_acc_nogh:""")

    if GH_AT < 0: GH('vmcnt(8) ')
    st(3)
    log = []
    for j in range(4): log += [('RA', j), ('RC', j)]
    def wait_for(*tags):
        last = max(k for k, e in enumerate(log) if e in tags)
        a(f"  s_waitcnt vmcnt({len(log) - 1 - last})")
    NSLOT = 16
    masked = set()
    def issueG(i):
        j = i // 4
        if j not in masked:
            wait_for(('RA', j)); MASK(j); masked.add(j)
        G(i, vM(i)); log.append(('G', i))
    for k in range(D):
        issueG(k)
        if k == 0: st(4)
    for i in range(NSLOT):
        if i + D < NSLOT: issueG(i + D)
        wait_for(('G', i), ('RC', i // 4))
        if i in (0, 4, 8, 12): st(5 + i // 4)
        A(i, vM(i))
        if i == GH_AT: GH('')
    st(9)
    for j in range(4):
        a(f"  v_min_u32 v70, 64, v{vCnt(j)}\n  v_sub_u32 v{vCnt(j)}, v{vCnt(j)}, v70\n  v_add_u32 v{vAdr(j)}, 256, v{vAdr(j)}")
    a(f"""  v_or_b32 v70, v{vCnt(0)}, v{vCnt(1)}
  v_or3_b32 v70, v70, v{vCnt(2)}, v{vCnt(3)}
  v_cmp_lt_u32 vcc, 0, v70
  s_nop 1
  s_cmp_lg_u64 vcc, 0
  s_cbranch_scc1 L_acc_round
  s_waitcnt lgkmcnt(0)
  s_barrier""")
    st(10)
    a(f"""  s_cmp_ge_u32 s96, {NW}
  s_cbranch_scc1 L_acc_fin_skip
  v_lshlrev_b32 v70, 5, v0
  ds_read_b128 v[20:23], v70
  ds_read_b128 v[24:27], v70 offset:16
  s_mul_i32 s97, s2, {BE * 8}
  v_lshlrev_b32 v70, 3, v0
  v_lshlrev_b32 v40, 16, v{vMR}
  v_and_b32 v41, 0xffff0000, v{vMR}
  v_lshlrev_b32 v42, 16, v{vMR+1}
  v_and_b32 v43, 0xffff0000, v{vMR+1}
  s_waitcnt lgkmcnt(0)""")
    for i in range(4): a(f"  v_cvt_f32_f64 v{28 + i}, v[{20 + 2*i}:{21 + 2*i}]")
    for j in range(4):
        a(f"  v_mul_f32 v{32 + j}, s{WD + j}, v28")
        for i in range(1, 4): a(f"  v_fmac_f32 v{32 + j}, s{WD + 4*i + j}, v{28 + i}")
    for j in range(4): a(f"  v_mul_f32 v{32 + j}, v{32 + j}, v{vG_ + j}")
    for j in range(4):
        a(f"  v_mul_f32 v{36 + j}, s{WU + j}, v32")
        for i in range(1, 4): a(f"  v_fmac_f32 v{36 + j}, s{WU + 4*i + j}, v{32 + i}")
    for j in range(4): a(f"  v_fmac_f32 v{40 + j}, v{36 + j}, v{vH_ + j}")
    r = {'S': 28, 'g': vG_, 'h': vH_}.get(DBG)
    if r is not None:
        for i in range(4): a(f"  v_mov_b32 v{40+i}, v{r+i}")
    a(f"""  v_cvt_pk_bf16_f32 v44, v40, v41
  v_cvt_pk_bf16_f32 v45, v42, v43
  buffer_store_dwordx2 v[44:45], v70, s[16:19], s97 offen{OST}
L_acc_fin_skip:""")
    if STAMP:
        a("  s_waitcnt vmcnt(0)")
        st(11); clk(15, 95, 100)
        a("  s_load_dwordx2 s[62:63], s[0:1], 104\n  s_waitcnt lgkmcnt(0)")
        a.srd(4, 62, S_OFF + 0x200000)
        stamp_out(1, 95, 100, 96, 4, 70)
    a("L_acc_end:\n  s_endpgm")
    return 96 + max(RING * 2, 8)

k1(); nv = k2()
a.descs([("part_kernel", 72, 64), ("acc_kernel", nv, 102)])
open(sys.argv[1], "w").write(a.text())
```

```python
import sys, os
from common import *

env = lambda k, d: type(d)(os.environ.get(k, d))
NS = 250; CH = 10240; BE = 640; P = 250; NW = BE // 64
A_OFF = 0; C_OFF = 0x1000000; T_OFF = 0x2000000; S_OFF = 0x3000000
MAGIC = (2**32 + BE - 1) // BE
assert all(((i * MAGIC) >> 32) == i // BE for i in range(E))
K1_LDS = 2048 + CH * 6
K2_LDS = BE * 32
LDNT = env('LDNT', ' nt'); STF = env('STF', ' sc0 sc1'); RLD = env('RLD', ''); OST = env('OST', '')
STAMP = env('STAMP', 0); DBG = env('DBG', '')
D = env('D', 3); PRIO = env('PRIO', 1); NOA = env('NOA', 0); NOGATHER = env('NOGATHER', 0)
OOB = 0x7fffff00
WARM = env('WARM', 0); GH_AT = env('GH_AT', -1); MPRE = env('MPRE', 0)

a = Asm()
a.header([("part_kernel", NS, 1024, K1_LDS), ("acc_kernel", 256, 1024, K2_LDS)])

def stamp(i, vreg, sp):
    if STAMP: a(f"  s_memrealtime s[{sp}:{sp+1}]\n  s_waitcnt lgkmcnt(0)\n  v_writelane_b32 v{vreg}, s{sp}, {i}")
def clk(i, vreg, sp):
    if STAMP: a(f"  s_memtime s[{sp}:{sp+1}]\n  s_waitcnt lgkmcnt(0)\n  v_writelane_b32 v{vreg}, s{sp}, {i}")
def stamp_out(kidx, vreg, sp, wavereg, srd, tmp):
    if STAMP: a(f"""  s_lshl_b32 s{sp}, s2, 4
  s_add_u32 s{sp}, s{sp}, s{wavereg}
  s_lshl_b32 s{sp}, s{sp}, 6
  s_add_u32 s{sp}, s{sp}, {hex(S_OFF + kidx * 0x100000)}
  v_and_b32 v{tmp}, 63, v0
  v_cmp_gt_u32 vcc, 16, v{tmp}
  v_lshlrev_b32 v{tmp}, 2, v{tmp}
  s_mov_b64 exec, vcc
  buffer_store_dword v{vreg}, v{tmp}, s[{srd}:{srd+3}], s{sp} offen
  s_mov_b64 exec, -1""")

def k1():
    a.kernel("part_kernel")
    vO = [8 + k for k in range(10)]; vI = [20 + k for k in range(10)]; vG = [30, 31, 32, 33, 34]
    vL = [36 + k for k in range(10)]; vR = [46 + k for k in range(10)]; vP = [56 + k for k in range(10)]
    st = lambda i: stamp(i, 70, 62)
    a(f"""  s_cmp_ge_u32 s2, {NS}
  s_cbranch_scc1 L_part_end
  s_load_dwordx4 s[4:7], s[0:1], 8
  s_load_dwordx2 s[8:9], s[0:1], 32
  s_load_dwordx2 s[10:11], s[0:1], 48
  s_load_dwordx2 s[12:13], s[0:1], 104""")
    if WARM: a("  s_load_dwordx2 s[48:49], s[0:1], 0\n  s_load_dwordx2 s[50:51], s[0:1], 24")
    a(f"""  v_lshlrev_b32 v1, 4, v0
  v_lshlrev_b32 v2, 3, v0
  v_lshlrev_b32 v3, 2, v0
  v_mov_b32 v4, 0
  v_mov_b32 v5, 1
  ds_write_b32 v3, v4
  v_readfirstlane_b32 s38, v0
  s_mul_i32 s32, s2, {CH*4}
  s_add_u32 s33, s32, 16384
  s_add_u32 s34, s32, 32768
  s_mul_i32 s35, s2, {CH*2}
  s_add_u32 s36, s35, 8192
  s_add_u32 s37, s35, 16384
  s_lshr_b32 s38, s38, 6
  s_movk_i32 s40, {-BE}
  s_waitcnt lgkmcnt(0)""")
    if STAMP: a("  v_mov_b32 v70, 0")
    st(0)
    a.srd(16, 6, T * 4); a.srd(20, 4, T * 4); a.srd(24, 8, T * 2)
    a(f"""  s_load_dword s39, s[10:11], 0
  buffer_load_dwordx4 v[8:11], v1, s[16:19], s32 offen{LDNT}
  buffer_load_dwordx4 v[12:15], v1, s[16:19], s33 offen{LDNT}
  buffer_load_dwordx2 v[16:17], v2, s[16:19], s34 offen{LDNT}
  buffer_load_dwordx4 v[20:23], v1, s[20:23], s32 offen{LDNT}
  buffer_load_dwordx4 v[24:27], v1, s[20:23], s33 offen{LDNT}
  buffer_load_dwordx2 v[28:29], v2, s[20:23], s34 offen{LDNT}
  buffer_load_dwordx2 v[30:31], v2, s[24:27], s35 offen{LDNT}
  buffer_load_dwordx2 v[32:33], v2, s[24:27], s36 offen{LDNT}
  buffer_load_dword v34, v3, s[24:27], s37 offen{LDNT}""")
    a.srd(28, 12, (S_OFF + 0x200000) if STAMP else (T_OFF + NS * 1024))
    X = 0
    if WARM:
        X = 2
        a.srd(52, 48, E * 8); a.srd(56, 50, E * 2)
        a(f"""  s_mul_i32 s48, s2, {BE * 8}
  s_mul_i32 s49, s2, {BE * 2}
  v_subrev_u32 v6, {(WARM - 1) * 64}, v0
  v_lshlrev_b32 v6, 7, v6
  v_mov_b32 v68, {hex(OOB)}
  v_cmp_gt_u32 vcc, {BE * 8}, v6
  s_nop 1
  v_cndmask_b32 v69, v68, v6, vcc
  buffer_load_dword v69, v69, s[52:55], s48 offen
  v_cmp_gt_u32 vcc, {BE * 2}, v6
  s_nop 1
  v_cndmask_b32 v68, v68, v6, vcc
  buffer_load_dword v68, v68, s[56:59], s49 offen""")
    a("  s_barrier")
    for g, (lo, hi) in enumerate([(0, 4), (4, 8), (8, 10)]):
        a(f"  s_waitcnt vmcnt({8-g+X})")
        st(1 + g)
        for k in range(lo, hi):
            a(f"""  v_mul_hi_u32_u24 v6, {hex(MAGIC)}, v{vO[k]}
  v_mad_i32_i24 v{vL[k]}, v6, s40, v{vO[k]}
  v_lshlrev_b32 v{vO[k]}, 2, v6
  ds_add_rtn_u32 v{vR[k]}, v{vO[k]}, v5""")
    st(4)
    a(f"""  s_waitcnt lgkmcnt(0)
  s_barrier
  s_cmp_lg_u32 s38, 0
  s_cbranch_scc1 L_part_noscan
  ds_read_b128 v[56:59], v1
  s_waitcnt lgkmcnt(0)
  v_add_u32 v60, v56, v57
  v_add_u32 v61, v60, v58
  v_add_u32 v62, v61, v59
  v_mov_b32 v63, v62""")
    for sh in (1, 2, 4, 8):
        a(f"  s_nop 1\n  v_add_u32_dpp v63, v63, v63 row_shr:{sh} row_mask:0xf bank_mask:0xf bound_ctrl:0")
    a(f"""  s_nop 1
  v_add_u32_dpp v63, v63, v63 row_bcast:15 row_mask:0xa bank_mask:0xf
  s_nop 1
  v_add_u32_dpp v63, v63, v63 row_bcast:31 row_mask:0xc bank_mask:0xf
  v_sub_u32 v64, v63, v62
  v_add_u32 v65, v64, v56
  v_add_u32 v66, v64, v60
  v_add_u32 v67, v64, v61
  ds_write_b128 v1, v[64:67] offset:1024
  v_lshl_or_b32 v56, v56, 16, v64
  v_lshl_or_b32 v57, v57, 16, v65
  v_lshl_or_b32 v58, v58, 16, v66
  v_lshl_or_b32 v59, v59, 16, v67
  s_lshl_b32 s41, s2, 10
  s_add_u32 s41, s41, {hex(T_OFF)}
  buffer_store_dwordx4 v[56:59], v1, s[28:31], s41 offen{STF}
  s_waitcnt lgkmcnt(0)
L_part_noscan:
  s_barrier""")
    st(5)
    for k in range(10): a(f"  ds_read_b32 v{vP[k]}, v{vO[k]} offset:1024")
    a(f"""  s_lshl_b32 s39, s39, 16
  v_mov_b32 v7, s39
  v_mul_f32 v7, 0.15915494, v7""")
    for g, (lo, hi) in enumerate([(0, 4), (4, 8), (8, 10)]):
        a(f"  s_waitcnt vmcnt({5-g+X})")
        for k in range(lo, hi):
            a(f"  v_lshlrev_b32 v{vI[k]}, 3, v{vI[k]}\n  v_lshl_or_b32 v{vI[k]}, v{vL[k]}, 21, v{vI[k]}")
    st(6)
    a("  s_waitcnt lgkmcnt(0)")
    for k in range(10):
        a(f"""  v_add_u32 v{vP[k]}, v{vP[k]}, v{vR[k]}
  v_lshlrev_b32 v{vR[k]}, 2, v{vP[k]}
  v_lshlrev_b32 v{vP[k]}, 1, v{vP[k]}
  ds_write_b32 v{vR[k]}, v{vI[k]} offset:2048""")
    waits = {0: 2, 2: 1, 4: 0}
    for p in range(5):
        if p in waits: a(f"  s_waitcnt vmcnt({waits[p]+X})")
        g = vG[p]
        a(f"""  v_lshlrev_b32 v6, 16, v{g}
  v_and_b32 v66, 0xffff0000, v{g}
  v_mul_f32 v6, v7, v6
  v_mul_f32 v66, v7, v66
  v_fract_f32 v6, v6
  v_fract_f32 v66, v66
  v_cos_f32 v6, v6
  v_cos_f32 v66, v66
  s_nop 0
  v_cvt_pk_bf16_f32 v{g}, v6, v66
  ds_write_b16 v{vP[2*p]}, v{g} offset:{2048 + CH*4}
  ds_write_b16_d16_hi v{vP[2*p+1]}, v{g} offset:{2048 + CH*4}""")
    st(7)
    a(f"""  s_mul_i32 s42, s2, {CH*4}
  s_add_u32 s43, s42, 16384
  s_add_u32 s44, s42, 32768
  s_mul_i32 s45, s2, {CH*2}
  s_add_u32 s45, s45, {hex(C_OFF)}
  s_sub_u32 s46, s45, 8192
  s_add_u32 s47, s45, 8192
  s_cmp_lt_u32 s38, 8
  s_cselect_b32 s44, s44, s46
  s_waitcnt lgkmcnt(0)
  s_barrier""")
    st(8)
    a(f"""  ds_read_b128 v[8:11], v1 offset:2048
  ds_read_b128 v[12:15], v1 offset:{2048+16384}
  ds_read_b128 v[16:19], v1 offset:{2048+32768}
  s_cmp_ge_u32 s38, 12
  s_cbranch_scc1 L_part_three
  ds_read_b128 v[20:23], v1 offset:{2048+49152}
  s_waitcnt lgkmcnt(0)
  buffer_store_dwordx4 v[20:23], v1, s[28:31], s47 offen{STF}
L_part_three:
  s_waitcnt lgkmcnt(0)
  buffer_store_dwordx4 v[8:11], v1, s[28:31], s42 offen{STF}
  buffer_store_dwordx4 v[12:15], v1, s[28:31], s43 offen{STF}
  buffer_store_dwordx4 v[16:19], v1, s[28:31], s44 offen{STF}""")
    st(9)
    if STAMP: a("  s_waitcnt vmcnt(0)")
    st(10)
    stamp_out(0, 70, 62, 38, 28, 6)
    a("L_part_end:\n  s_endpgm")

def k2():
    RING = D + 2
    a.kernel("acc_kernel")
    vA = lambda j, k: 20 + 4 * j + k
    vC = lambda j: 36 + 2 * j
    vCnt = lambda j: 44 + j
    vAdr = lambda j: 48 + j
    vRem = lambda j: 52 + j
    vM = lambda i: 96 + (i % RING) * 2
    vG_, vH_, vMR, vDist = 12, 16, 10, 9
    WD, WU = 20, 36
    st = lambda i: stamp(i, 95, 100)
    q = lambda j: f"quad_perm:[{j},{j},{j},{j}] row_mask:0xf bank_mask:0xf"
    a(f"""  s_cmp_ge_u32 s2, 256
  s_cbranch_scc1 L_acc_end
  s_mov_b32 s63, s2
  s_and_b32 s3, s2, 7
  s_lshr_b32 s2, s2, 3
  s_mul_i32 s3, s3, 32
  s_add_u32 s2, s2, s3
  s_mul_i32 s3, s2, 250
  s_lshr_b32 s4, s3, 8
  s_add_u32 s3, s3, 250
  s_lshr_b32 s3, s3, 8
  s_cmp_eq_u32 s3, s4
  s_cbranch_scc1 L_acc_end
  s_mov_b32 s2, s4
  s_load_dwordx2 s[52:53], s[0:1], 104
  s_load_dwordx2 s[54:55], s[0:1], 0
  s_load_dwordx2 s[56:57], s[0:1], 24
  s_load_dwordx2 s[58:59], s[0:1], 88
  s_load_dwordx2 s[60:61], s[0:1], 40
  s_load_dwordx4 s[64:67], s[0:1], 56
  s_load_dwordx4 s[68:71], s[0:1], 72""")
    if PRIO: a("  s_setprio 3")
    a(f"""  v_and_b32 v1, 63, v0
  v_readfirstlane_b32 s96, v0
  v_and_b32 v4, 3, v0
  v_lshlrev_b32 v5, 3, v4
  v_lshlrev_b32 v4, 1, v4
  v_lshlrev_b32 v70, 4, v0
  v_mov_b32 v76, 0
  v_mov_b32 v77, 0
  v_mov_b32 v78, 0
  v_mov_b32 v79, 0
  ds_write_b128 v70, v[76:79]
  ds_write_b128 v70, v[76:79] offset:16384
  s_lshr_b32 s96, s96, 6
  s_lshl_b32 s97, s2, 2
  v_lshrrev_b32 v2, 4, v1
  v_lshlrev_b32 v2, 4, v2
  v_add_u32 v2, s96, v2
  v_and_b32 v3, 15, v1
  v_lshlrev_b32 v3, 2, v3
  v_lshlrev_b32 v72, 10, v2
  v_add_u32 v73, {64 * 1024}, v72
  v_add_u32 v74, {128 * 1024}, v72
  v_add_u32 v75, {192 * 1024}, v72
  s_waitcnt lgkmcnt(0)""")
    if STAMP: a("  v_mov_b32 v95, 0")
    st(0); clk(14, 95, 100)
    if MPRE:
        a.srd(12, 54, E * 8)
        a(f"""  s_cmp_ge_u32 s96, 5
  s_cbranch_scc1 L_acc_nopre
  s_lshr_b32 s99, s63, 3
  s_mul_i32 s99, s99, {313 * 128}
  v_lshlrev_b32 v69, 7, v0
  v_cmp_gt_u32 vcc, 313, v0
  s_mov_b64 exec, vcc
  buffer_load_dword v67, v69, s[12:15], s99 offen
  s_mov_b64 exec, -1
L_acc_nopre:""")
    a.srd(88, 52, NS * 1024, add=T_OFF)
    for j in range(4): a(f"  buffer_load_dword v{vCnt(j)}, v{72 + j}, s[88:91], s97 offen{RLD}")
    a.srd(4, 52, NS * CH * 4, add=A_OFF); a.srd(8, 52, NS * CH * 2 + 16, add=C_OFF); a.srd(12, 54, E * 8); a.srd(16, 58, E * 8); a.srd(92, 56, E * 2)
    a(f"""  s_mul_i32 s97, s2, {BE}
  v_add_u32 v73, s97, v0
  v_lshlrev_b32 v74, 1, v73
  v_lshlrev_b32 v75, 3, v73
  s_cmp_ge_u32 s96, {NW}
  s_cbranch_scc1 L_acc_nofin0
  buffer_load_ushort v{vDist}, v74, s[92:95], 0 offen
  buffer_load_dwordx2 v[{vMR}:{vMR+1}], v75, s[12:15], 0 offen
  s_load_dwordx16 s[72:87], s[66:67], 0
  s_load_dwordx8 s[20:27], s[68:69], 0
  s_load_dwordx8 s[36:43], s[70:71], 0
  s_load_dwordx4 s[68:71], s[60:61], 0
  s_load_dwordx16 s[52:67], s[64:65], 0
L_acc_nofin0:
  v_lshlrev_b32 v68, 24, v4
  v_lshl_or_b32 v68, v4, 16, v68
  v_add_u32 v68, 0x01000c0c, v68
  v_mov_b32 v69, {hex(OOB)}
  v_mul_u32_u24 v2, {CH * 4}, v2
  s_mov_b32 s98, 0
  s_barrier
  s_cmp_ge_u32 s96, {NW}
  s_cbranch_scc1 L_acc_w0
  s_waitcnt vmcnt(2)
  s_branch L_acc_w1
L_acc_w0:
  s_waitcnt vmcnt(0)
L_acc_w1:""")
    st(1)
    for j in range(4):
        a(f"""  v_and_b32 v70, 0xffff, v{vCnt(j)}
  v_lshrrev_b32 v{vCnt(j)}, 16, v{vCnt(j)}
  v_lshl_add_u32 v{vAdr(j)}, v70, 2, v2""")
        if j: a(f"  v_add_u32 v{vAdr(j)}, {j * 64 * CH * 4}, v{vAdr(j)}")
    a("L_acc_round:")
    for j in range(4):
        a(f"""  v_min_u32 v70, 64, v{vCnt(j)}
  v_sub_u32 v{vRem(j)}, v70, v3
  v_lshl_add_u32 v{72 + j}, v3, 2, v{vAdr(j)}
  v_cmp_lt_i32 s[{88 + 2*j}:{89 + 2*j}], 0, v{vRem(j)}""")
    a("  s_nop 0")
    for j in range(4):
        a(f"  v_cndmask_b32 v{72 + j}, v69, v{72 + j}, s[{88 + 2*j}:{89 + 2*j}]")
    for j in range(4):
        a(f"  v_lshrrev_b32 v{76 + j}, 1, v{72 + j}")
    for j in range(4):
        a(f"  buffer_load_dwordx4 v[{vA(j,0)}:{vA(j,3)}], v{72 + j}, s[4:7], 0 offen{RLD}")
        a(f"  buffer_load_dwordx2 v[{vC(j)}:{vC(j)+1}], v{76 + j}, s[8:11], 0 offen{RLD}")
    if PRIO: a("  s_setprio 0")
    st(2)

    def G(i, m):
        j, k = i // 4, i % 4
        a(f"  v_and_b32 v70, 0x1fffff, v{vA(j,k)}\n  v_lshrrev_b32 v{vA(j,k)}, 16, v{vA(j,k)}")
        if NOGATHER: a("  v_or_b32 v70, 0x200000, v70")
        a(f"  buffer_load_dwordx2 v[{m}:{m+1}], v70, s[12:15], 0 offen")
        a(f"  v_and_b32 v{vA(j,k)}, 0xffe0, v{vA(j,k)}")
    def A(i, m):
        j, k = i // 4, i % 4
        if NOA:
            a(f"  v_add_u32 v88, v{m}, v88"); return
        c = vC(j) + k // 2
        a(f"  v_lshlrev_b32 v71, 16, v{c}" if k % 2 == 0 else f"  v_and_b32 v71, 0xffff0000, v{c}")
        for t in range(4): a(f"  v_mov_b32_dpp v{72 + t}, v{m} {q(t)}")
        for t in range(4): a(f"  v_mov_b32_dpp v{88 + t}, v{m+1} {q(t)}")
        for t in range(4): a(f"  v_perm_b32 v{88 + t}, v{88 + t}, v{72 + t}, v68")
        for t in range(4): a(f"  v_add_u32_dpp v{84 + t}, v{vA(j,k)}, v5 {q(t)}")
        for t in range(4): a(f"  v_mul_f32_dpp v{88 + t}, v71, v{88 + t} {q(t)}")
        for t in range(4): a(f"  v_cvt_f64_f32 v[{76 + 2*t}:{77 + 2*t}], v{88 + t}")
        for t in range(4): a(f"  ds_add_f64 v{84 + t}, v[{76 + 2*t}:{77 + 2*t}]")
    def MASK(j):
        for k in range(4): a(f"  v_cmp_lt_i32 s[{88 + 2*k}:{89 + 2*k}], {k}, v{vRem(j)}")
        for k in range(4): a(f"  v_cndmask_b32 v{vA(j,k)}, -1, v{vA(j,k)}, s[{88 + 2*k}:{89 + 2*k}]")

    a(f"""  v_max_u32 v70, v{vCnt(0)}, v{vCnt(1)}
  v_max3_u32 v70, v70, v{vCnt(2)}, v{vCnt(3)}
  v_cmp_lt_u32 vcc, 64, v70
  s_nop 1
  s_cmp_eq_u64 vcc, 0
  s_cbranch_scc1 L_acc_nospare
  v_mov_b32 v56, 0
  v_mov_b32 v57, 0
  v_mov_b32 v58, -1""")
    for j in (3, 2, 1, 0):
        a(f"""  v_cmp_lt_u32 vcc, 64, v{vCnt(j)}
  v_subrev_u32 v70, 64, v{vCnt(j)}
  v_add_u32 v71, 256, v{vAdr(j)}
  v_cndmask_b32 v56, v56, v70, vcc
  v_cndmask_b32 v57, v57, v71, vcc
  v_cndmask_b32 v58, v58, {j}, vcc""")
    a(f"""  v_min_u32 v56, 64, v56
  v_sub_u32 v59, v56, v3
  v_lshl_add_u32 v57, v3, 2, v57
  v_cmp_lt_i32 vcc, 0, v59
  s_nop 1
  v_cndmask_b32 v57, v69, v57, vcc
  v_lshrrev_b32 v70, 1, v57
  buffer_load_dwordx4 v[60:63], v57, s[4:7], 0 offen{RLD}
  buffer_load_dwordx2 v[64:65], v70, s[8:11], 0 offen{RLD}""")
    for j in range(4):
        a(f"""  v_cmp_eq_u32 vcc, {j}, v58
  v_lshlrev_b32 v70, 2, v56
  s_nop 0
  v_cndmask_b32 v71, 0, v70, vcc
  v_cndmask_b32 v70, 0, v56, vcc
  v_add_u32 v{vAdr(j)}, v{vAdr(j)}, v71
  v_sub_u32 v{vCnt(j)}, v{vCnt(j)}, v70""")
    a("  s_waitcnt vmcnt(0)")
    for k in range(4): a(f"  v_cmp_lt_i32 s[{88 + 2*k}:{89 + 2*k}], {k}, v59")
    for k in range(4): a(f"  v_cndmask_b32 v{60 + k}, -1, v{60 + k}, s[{88 + 2*k}:{89 + 2*k}]")
    for k in range(4):
        a(f"""  v_and_b32 v70, 0x1fffff, v{60 + k}
  v_lshrrev_b32 v{60 + k}, 16, v{60 + k}
  buffer_load_dwordx2 v[{96 + 2*k}:{97 + 2*k}], v70, s[12:15], 0 offen
  v_and_b32 v{60 + k}, 0xffe0, v{60 + k}""")
    a("  s_waitcnt vmcnt(0)")
    for k in range(4):
        m = 96 + 2 * k; c = 64 + k // 2
        a(f"  v_lshlrev_b32 v71, 16, v{c}" if k % 2 == 0 else f"  v_and_b32 v71, 0xffff0000, v{c}")
        for t in range(4): a(f"  v_mov_b32_dpp v{72 + t}, v{m} {q(t)}")
        for t in range(4): a(f"  v_mov_b32_dpp v{88 + t}, v{m+1} {q(t)}")
        for t in range(4): a(f"  v_perm_b32 v{88 + t}, v{88 + t}, v{72 + t}, v68")
        for t in range(4): a(f"  v_add_u32_dpp v{84 + t}, v{60 + k}, v5 {q(t)}")
        for t in range(4): a(f"  v_mul_f32_dpp v{88 + t}, v71, v{88 + t} {q(t)}")
        for t in range(4): a(f"  v_cvt_f64_f32 v[{76 + 2*t}:{77 + 2*t}], v{88 + t}")
        for t in range(4): a(f"  ds_add_f64 v{84 + t}, v[{76 + 2*t}:{77 + 2*t}]")
    a("L_acc_nospare:")

    def GH(GHW):
        a(f"""  s_cmp_lg_u32 s98, 0
      s_cbranch_scc1 L_acc_nogh
      s_mov_b32 s98, 1
      s_cmp_ge_u32 s96, {NW}
      s_cbranch_scc1 L_acc_nogh
      s_waitcnt lgkmcnt(0)""")
        for base in (72, 52):
            for kp in range(4):
                for jp in range(2):
                    x = base + (2 * kp) * 2 + jp; y = base + (2 * kp + 1) * 2 + jp
                    a(f"  s_pack_ll_b32_b16 s97, s{x}, s{y}\n  s_pack_hh_b32_b16 s{y}, s{x}, s{y}\n  s_mov_b32 s{x}, s97")
        for i in range(7, -1, -1):
            a(f"  s_and_b32 s{WD + 2*i + 1}, s{20 + i}, 0xffff0000\n  s_lshl_b32 s{WD + 2*i}, s{20 + i}, 16")
            a(f"  s_and_b32 s{WU + 2*i + 1}, s{36 + i}, 0xffff0000\n  s_lshl_b32 s{WU + 2*i}, s{36 + i}, 16")
        a(f"  s_waitcnt {GHW}lgkmcnt(0)\n  v_lshlrev_b32 v{vDist}, 16, v{vDist}")
        NEG10 = f32hex(-10.0); LOG2E = f32hex(math.log2(math.e))
        for kp in range(4):
            c = 68 + kp
            a(f"""  s_lshl_b32 s97, s{c}, 16
      s_and_b32 s99, s{c}, 0xffff0000
      v_subrev_f32 v70, s97, v{vDist}
      v_subrev_f32 v71, s99, v{vDist}
      v_cvt_pk_bf16_f32 v72, v70, v71
      v_lshlrev_b32 v70, 16, v72
      v_and_b32 v71, 0xffff0000, v72
      v_mul_f32 v70, v70, v70
      v_mul_f32 v71, v71, v71
      v_cvt_pk_bf16_f32 v72, v70, v71
      v_lshlrev_b32 v70, 16, v72
      v_and_b32 v71, 0xffff0000, v72
      v_mul_f32 v70, {NEG10}, v70
      v_mul_f32 v71, {NEG10}, v71
      v_cvt_pk_bf16_f32 v72, v70, v71
      v_lshlrev_b32 v70, 16, v72
      v_and_b32 v71, 0xffff0000, v72
      v_mul_f32 v70, {LOG2E}, v70
      v_mul_f32 v71, {LOG2E}, v71
      v_exp_f32 v70, v70
      v_exp_f32 v71, v71
      s_nop 0
      v_cvt_pk_bf16_f32 v{80 + kp}, v70, v71""")
        for (base, dst) in ((72, vG_), (52, vH_)):
            for j in range(4):
                jp, hi = j // 2, j % 2
                for kp in range(4):
                    s = base + (2 * kp + hi) * 2 + jp
                    a(f"  v_dot2_f32_bf16 v{dst + j}, v{80 + kp}, s{s}, {'0' if kp == 0 else 'v%d' % (dst + j)}")
        a(f"""  s_nop 2
      v_cvt_pk_bf16_f32 v70, v{vH_}, v{vH_+1}
      v_cvt_pk_bf16_f32 v71, v{vH_+2}, v{vH_+3}
      v_lshlrev_b32 v{vH_}, 16, v70
      v_and_b32 v{vH_+1}, 0xffff0000, v70
      v_lshlrev_b32 v{vH_+2}, 16, v71
      v_and_b32 v{vH_+3}, 0xffff0000, v71
    L_acc_nogh:""")

    if GH_AT < 0: GH('vmcnt(8) ')
    st(3)
    log = []
    for j in range(4): log += [('RA', j), ('RC', j)]
    def wait_for(*tags):
        last = max(k for k, e in enumerate(log) if e in tags)
        a(f"  s_waitcnt vmcnt({len(log) - 1 - last})")
    NSLOT = 16
    masked = set()
    def issueG(i):
        j = i // 4
        if j not in masked:
            wait_for(('RA', j)); MASK(j); masked.add(j)
        G(i, vM(i)); log.append(('G', i))
    for k in range(D):
        issueG(k)
        if k == 0: st(4)
    for i in range(NSLOT):
        if i + D < NSLOT: issueG(i + D)
        wait_for(('G', i), ('RC', i // 4))
        if i in (0, 4, 8, 12): st(5 + i // 4)
        A(i, vM(i))
        if i == GH_AT: GH('')
    st(9)
    for j in range(4):
        a(f"  v_min_u32 v70, 64, v{vCnt(j)}\n  v_sub_u32 v{vCnt(j)}, v{vCnt(j)}, v70\n  v_add_u32 v{vAdr(j)}, 256, v{vAdr(j)}")
    a(f"""  v_or_b32 v70, v{vCnt(0)}, v{vCnt(1)}
  v_or3_b32 v70, v70, v{vCnt(2)}, v{vCnt(3)}
  v_cmp_lt_u32 vcc, 0, v70
  s_nop 1
  s_cmp_lg_u64 vcc, 0
  s_cbranch_scc1 L_acc_round
  s_waitcnt lgkmcnt(0)
  s_barrier""")
    st(10)
    a(f"""  s_cmp_ge_u32 s96, {NW}
  s_cbranch_scc1 L_acc_fin_skip
  v_lshlrev_b32 v70, 5, v0
  ds_read_b128 v[20:23], v70
  ds_read_b128 v[24:27], v70 offset:16
  s_mul_i32 s97, s2, {BE * 8}
  v_lshlrev_b32 v70, 3, v0
  v_lshlrev_b32 v40, 16, v{vMR}
  v_and_b32 v41, 0xffff0000, v{vMR}
  v_lshlrev_b32 v42, 16, v{vMR+1}
  v_and_b32 v43, 0xffff0000, v{vMR+1}
  s_waitcnt lgkmcnt(0)""")
    for i in range(4): a(f"  v_cvt_f32_f64 v{28 + i}, v[{20 + 2*i}:{21 + 2*i}]")
    for j in range(4):
        a(f"  v_mul_f32 v{32 + j}, s{WD + j}, v28")
        for i in range(1, 4): a(f"  v_fmac_f32 v{32 + j}, s{WD + 4*i + j}, v{28 + i}")
    for j in range(4): a(f"  v_mul_f32 v{32 + j}, v{32 + j}, v{vG_ + j}")
    for j in range(4):
        a(f"  v_mul_f32 v{36 + j}, s{WU + j}, v32")
        for i in range(1, 4): a(f"  v_fmac_f32 v{36 + j}, s{WU + 4*i + j}, v{32 + i}")
    for j in range(4): a(f"  v_fmac_f32 v{40 + j}, v{36 + j}, v{vH_ + j}")
    r = {'S': 28, 'g': vG_, 'h': vH_}.get(DBG)
    if r is not None:
        for i in range(4): a(f"  v_mov_b32 v{40+i}, v{r+i}")
    a(f"""  v_cvt_pk_bf16_f32 v44, v40, v41
  v_cvt_pk_bf16_f32 v45, v42, v43
  buffer_store_dwordx2 v[44:45], v70, s[16:19], s97 offen{OST}
L_acc_fin_skip:""")
    if STAMP:
        a("  s_waitcnt vmcnt(0)")
        st(11); clk(15, 95, 100)
        a("  s_load_dwordx2 s[62:63], s[0:1], 104\n  s_waitcnt lgkmcnt(0)")
        a.srd(4, 62, S_OFF + 0x200000)
        stamp_out(1, 95, 100, 96, 4, 70)
    a("L_acc_end:\n  s_endpgm")
    return 96 + max(RING * 2, 8)

k1(); nv = k2()
a.descs([("part_kernel", 72, 64), ("acc_kernel", nv, 102)])
open(sys.argv[1], "w").write(a.text())
```
